```python
import torch

def _softmax(x, axis=-1):
    return torch.softmax(x, dim=axis)
def _gelu(x):
    return torch.nn.functional.gelu(x, approximate="tanh")
def _silu(x):
    return torch.nn.functional.silu(x)
def _sigmoid(x):
    return torch.sigmoid(x)
def _layernorm(x, axis=-1, eps=1e-5):
    m = x.mean(dim=axis, keepdim=True)
    v = x.var(dim=axis, keepdim=True, unbiased=False)
    return (x - m) / torch.sqrt(v + eps)
def _scatter_add(tgt, idx, src, axis=0):
    return tgt.clone().index_add_(axis, idx, src)
def _segment_sum(src, seg, n):
    out = torch.zeros((n,) + src.shape[1:], dtype=src.dtype)
    return out.index_add_(0, seg, src)
def _pad(x, pw):
    flat = tuple(v for pair in reversed(pw) for v in pair)
    return torch.nn.functional.pad(x, flat)

kernel_name = 'standalone__weight_only_int_gptq__prompt'

def setup_inputs():

    _w = (lambda a: (lambda t: t.to(torch.bfloat16) if t.is_floating_point() else t)(torch.as_tensor(a)))
    B, S, D, F = 1, 2048, 1024, 3584
    bits = max(2, min(4, 2))
    pf = 32 // bits
    G = 64 if 64 > 0 else D
    G = max(pf, (G // pf) * pf)
    D = max(G, (D // G) * G)
    ng = D // G
    qmax = 1 << bits
    qw = torch.randint(0, qmax, (D, F)).to(torch.int64)
    packed = torch.zeros((D // pf, F), dtype=torch.int64)
    for i in range(pf):
        packed |= (qw[i::pf] << (i * bits))
    packed = packed.to(torch.int32)
    return {
        "x": _w((lambda *s: torch.randn(*s, dtype=torch.bfloat16) * 0.05)(B, S, D)),
        "qw_packed": _w(packed),
        "scales": _w(torch.abs((lambda *s: torch.randn(*s, dtype=torch.bfloat16) * 0.05)(ng, F)).to(float) * 0.1 + 0.01),
        "zeros": _w(torch.randint(0, qmax, (ng, F)).to(float)),
        "bits": _w((lambda _x: torch.as_tensor(_x, dtype=torch.int32))(bits)),
    }

def reference(x, qw_packed, scales, zeros, bits):
    b = int(bits)
    pf = 32 // b
    mask = (1 << b) - 1
    P, F = qw_packed.shape
    D = P * pf
    ng = scales.shape[0]
    G = D // ng
    shifts = (lambda x, dt: x.to(dt))(torch.arange(pf) * b, qw_packed.dtype)
    qw = ((qw_packed[:, None, :] >> shifts[None, :, None]) & mask).reshape(D, F)
    s = (lambda x, n, axis: torch.repeat_interleave(x, n, dim=axis))(scales, G, axis=0)
    z = (lambda x, n, axis: torch.repeat_interleave(x, n, dim=axis))(zeros, G, axis=0)
    w = ((lambda x, dt: x.to(dt))(qw, x.dtype) - z) * s
    return torch.einsum("bsd,df->bsf", x, w)
```

```python
import sys
KNAME = "standalone__weight_only_int_gptq__prompt_kernel"
M, N, K = 2048, 3584, 1024
ROWX = K * 2
ROWQ = N * 4
ROWS = N * 2
NST = 8
NSLOT = 5
SLOT = 32768

class Cfg:
    D = 2
    store_flags = "sc1"
    lds = NSLOT * SLOT
    dma_at = {2: 0, 3: 2, 4: 4}
    last_barrier = 5
    prio_lead = 1
    debug = False

S_X, S_Q, S_SC, S_ZR, S_OUT = 16, 20, 24, 28, 32
S_VSEL = 36
S_M03, S_THREE, S_TLO, S_THI = 40, 41, 42, 43
S_WAVE, S_XOFF, S_M0B = 44, 45, 46
S_WOFF = 48
S_SOFF = 50
S_OB = 52
S_T0, S_T1, S_T2, S_T3 = 60, 61, 62, 63
S_MT, S_NT = 64, 65

class Role:
    def __init__(s, name, ncols, xfr, mfmas, nsets):
        s.name = name; s.ncols = ncols
        s.xfr = xfr
        s.mfmas = mfmas
        s.nsets = nsets
ROLE_A = Role("A", 1, [(0, 0), (0, 4096), (0, 8192), (0, 12288)], [(0, 0), (0, 1), (0, 2), (0, 3)], 1)
ROLE_X = Role("X", 1, [(0, 0), (0, 4096), (0, 8192)], [(0, 0), (0, 1), (0, 2)], 1)
ROLE_Y = Role("Y", 2, [(0, 0), (1, 0)], [(0, 1), (0, 0), (1, 0)], 2)

class Emit:
    def __init__(s):
        s.l = []
        s.vm = []
        s.lg = []
    def __call__(s, t): s.l.append("    " + t)
    def label(s, t): s.l.append(t + ":")
    def vmem(s, t, tag): s(t); s.vm.append(tag)
    def lds(s, t, tag): s(t); s.lg.append(tag)
    def wait_vm(s, tag):
        idx = [i for i, t in enumerate(s.vm) if t == tag]
        if not idx: return
        n = len(s.vm) - 1 - idx[-1]
        s(f"s_waitcnt vmcnt({n})")
        s.vm = s.vm[idx[-1] + 1:]
    def wait_vm_all(s):
        s("s_waitcnt vmcnt(0)"); s.vm = []
    def wait_lg(s, tag):
        idx = [i for i, t in enumerate(s.lg) if t == tag]
        if not idx: return
        n = len(s.lg) - 1 - idx[-1]
        assert n <= 15
        s(f"s_waitcnt lgkmcnt({n})")
        s.lg = s.lg[idx[-1] + 1:]

V_LANE = 1
V_DMA = 2
V_W = 6
V_S = 10
V_C4 = 11
V_ST = 12
V_T = 13
V_FREE = 16

def slot_of(st): return st % NSLOT
def base_of(st): return (slot_of(st) // 2) * 65536
def imm_of(st): return (slot_of(st) % 2) * SLOT

def gen_role(e, r, cfg):
    D = cfg.D
    nx = len(r.xfr)
    p = V_FREE
    def alloc(n, al=1):
        nonlocal p
        p = (p + al - 1) // al * al
        q = p; p += n
        return q
    ADDR = [alloc(8) for _ in range(r.nsets)]
    ACC = [alloc(16, 4) for _ in r.mfmas]
    XF = [[alloc(4, 4) for _ in range(nx)] for _ in range(D)]
    WF = [[alloc(4, 4) for _ in range(r.ncols)] for _ in range(2)]
    WD = [[alloc(4, 2) for _ in range(r.ncols)] for _ in range(3)]
    SZ = [[alloc(2) for _ in range(r.ncols)] for _ in range(3)]
    TB = [[alloc(2) for _ in range(r.ncols)] for _ in range(2)]
    W2 = [alloc(2, 2) for _ in range(r.ncols)]
    VV = [alloc(4, 2) for _ in range(r.ncols)]
    TT = [alloc(4) for _ in range(r.ncols)]
    assert p <= 256, p
    r.nvgpr = p

    def dma(st):
        e(f"s_add_u32 m0, s{S_M0B}, {slot_of(st) * SLOT}")
        e(f"s_add_u32 s{S_T0}, s{S_XOFF}, {st * 256}")
        for j in range(4):
            e.vmem(f"buffer_load_dwordx4 v{V_DMA + j}, s[{S_X}:{S_X+3}], s{S_T0} offen offset:{j*1024} lds", ("dma", st))
    def wload(st):
        for c in range(r.ncols):
            e(f"s_add_u32 s{S_T1}, s{S_SOFF + c}, {st * 2 * ROWS}")
            e(f"s_add_u32 s{S_T2}, s{S_WOFF + c}, {st * 8 * ROWQ}")
            sz = SZ[st % 3][c]
            e.vmem(f"buffer_load_short_d16_hi v{sz}, v{V_S}, s[{S_SC}:{S_SC+3}], s{S_T1} offen", ("sz", st))
            e.vmem(f"buffer_load_short_d16_hi v{sz+1}, v{V_S}, s[{S_ZR}:{S_ZR+3}], s{S_T1} offen", ("sz", st))
            for t in range(4):
                e.vmem(f"buffer_load_dword v{WD[st % 3][c] + t}, v{V_W + t}, s[{S_Q}:{S_Q+3}], s{S_T2} offen", ("w", st))
    def table_ops(st, c):
        s_, z_ = SZ[st % 3][c], SZ[st % 3][c] + 1
        t = TT[c]; tb = TB[st % 2][c]
        return [f"v_mul_f32 v{t}, v{z_}, v{s_}",
                f"v_sub_f32 v{t+1}, v{s_}, v{t}",
                f"v_fma_f32 v{t+2}, 2.0, v{s_}, -v{t}",
                f"v_fma_f32 v{t+3}, s{S_THREE}, v{s_}, -v{t}",
                f"v_cvt_pk_bf16_f32 v{t}, -v{t}, v{t+1}",
                f"v_cvt_pk_bf16_f32 v{t+2}, v{t+2}, v{t+3}",
                f"v_perm_b32 v{tb}, v{t+2}, v{t}, s{S_TLO}",
                f"v_perm_b32 v{tb+1}, v{t+2}, v{t}, s{S_THI}"]
    def deq_ops(G, c):
        st, i = divmod(G, 8)
        t, half = i // 2, i & 1
        w = WD[st % 3][c]; v = VV[c]; f = WF[G % 2][c]; tb = TB[st % 2][c]
        o = []
        if i % 4 == 0:
            o.append(f"v_lshrrev_b64 v[{W2[c]}:{W2[c]+1}], 2, v[{w+t}:{w+t+1}]")
        o.append(f"v_perm_b32 v{v}, v{W2[c] + (t & 1)}, v{w+t}, s{S_VSEL + 2*half}")
        o.append(f"v_perm_b32 v{v+1}, v{W2[c] + (t & 1)}, v{w+t}, s{S_VSEL + 2*half + 1}")
        o.append(f"v_and_or_b32 v{f}, v{v}, s{S_M03}, v{V_C4}")
        o.append(f"v_lshrrev_b64 v[{v+2}:{v+3}], 4, v[{v}:{v+1}]")
        o.append(f"v_and_or_b32 v{f+2}, v{v+1}, s{S_M03}, v{V_C4}")
        o.append(f"v_perm_b32 v{f}, v{tb+1}, v{tb}, v{f}")
        o.append(f"v_and_or_b32 v{f+1}, v{v+2}, s{S_M03}, v{V_C4}")
        o.append(f"v_perm_b32 v{f+2}, v{tb+1}, v{tb}, v{f+2}")
        o.append(f"v_and_or_b32 v{f+3}, v{v+3}, s{S_M03}, v{V_C4}")
        o.append(f"v_perm_b32 v{f+1}, v{tb+1}, v{tb}, v{f+1}")
        o.append(f"v_perm_b32 v{f+3}, v{tb+1}, v{tb}, v{f+3}")
        return o
    def xread(G, xi):
        st, i = divmod(G, 8)
        aset, imm = r.xfr[xi]
        x = XF[G % D][xi]
        e.lds(f"ds_read_b128 v[{x}:{x+3}], v{ADDR[aset] + i} offset:{imm + imm_of(st)}", ("x", G, xi))

    e.label(f"L_role_{r.name}")
    e.vm = [("dma", 0)] * 4
    e.lg = []
    for a in SZ:
        for q in a:
            e(f"v_mov_b32 v{q}, 0"); e(f"v_mov_b32 v{q+1}, 0")
    wload(0)
    dma(1)
    wload(1)
    e(f"v_lshrrev_b32 v{V_T}, 5, v{V_LANE}")
    e(f"v_and_b32 v{V_T+1}, 31, v{V_LANE}")
    e(f"v_lshlrev_b32 v{V_T}, 14, v{V_T}")
    e(f"v_lshl_add_u32 v{V_T}, v{V_T+1}, 7, v{V_T}")
    e(f"v_bfe_u32 v{V_T+1}, v{V_T+1}, 1, 3")
    e(f"v_lshl_add_u32 v{V_T}, v{V_T+1}, 4, v{V_T}")
    for k in range(r.nsets):
        e(f"v_add_u32 v{ADDR[k]}, s{S_OB + 4 + k}, v{V_T}")
        for i in range(1, 8):
            e(f"v_xor_b32 v{ADDR[k] + i}, {i * 16}, v{ADDR[k]}")
    e.wait_vm(("w", 0))
    for c in range(r.ncols):
        for o in table_ops(0, c): e(o)
    for c in range(r.ncols):
        for o in deq_ops(0, c): e(o)
    e.wait_vm(("dma", 0))
    e("s_barrier")
    for G in range(D):
        for xi in sorted(range(nx), key=lambda x: [m[1] for m in r.mfmas].index(x)):
            xread(G, xi)
    pend_addr = []
    for G in range(64):
        st, i = divmod(G, 8)
        valu = []
        pre_wait = []
        if st + 1 < NST and 2 <= i < 6:
            for c in range(r.ncols):
                valu += table_ops(st + 1, c)[(i - 2) * 2:(i - 2) * 2 + 2]
            if i == 2: pre_wait.append(("w", st + 1))
        valu += pend_addr; pend_addr = []
        if G + 1 < 64:
            for c in range(r.ncols):
                valu += deq_ops(G + 1, c)
        nm = len(r.mfmas)
        chunks = [valu[len(valu) * j // nm: len(valu) * (j + 1) // nm] for j in range(nm)]
        vmem_here = []
        if i == 0 and st + 2 < NST: vmem_here.append(("w", st + 2))
        for s2, g2 in cfg.dma_at.items():
            if g2 == G: vmem_here.append(("d", s2))
        first_read = True
        for j, (c, xi) in enumerate(r.mfmas):
            e.wait_lg(("x", G, xi))
            x = XF[G % D][xi]; f = WF[G % 2][c]; a = ACC[j]
            srcc = "0" if G == 0 else f"v[{a}:{a+15}]"
            if j == 0 and G > 0:
                e("s_nop 0" if "s_waitcnt" in e.l[-1] else "s_nop 1")
            e(f"v_mfma_f32_32x32x16_bf16 v[{a}:{a+15}], v[{x}:{x+3}], v[{f}:{f+3}], {srcc}")
            lastuse = all(m[1] != xi for m in r.mfmas[j + 1:])
            if lastuse and G + D < 64:
                ns, ni = divmod(G + D, 8)
                if ni == 0 and first_read and ns <= cfg.last_barrier:
                    if ns == cfg.last_barrier:
                        last = [t for t in e.vm if t[0] == "dma"]
                        if last: e.wait_vm(last[-1])
                    else:
                        e.wait_vm(("dma", ns))
                    e("s_barrier")
                    if ns + 3 >= NSLOT and ns + 3 < NST: dma(ns + 3)
                    if ns == cfg.last_barrier and r.name == "A" and cfg.prio_lead: e(f"s_setprio {cfg.prio_lead}")
                first_read = False
                xread(G + D, xi)
            if j == 0:
                for kind, s2 in vmem_here:
                    if kind == "w": wload(s2)
                    else: dma(s2)
                for t in pre_wait: e.wait_vm(t)
            for o in chunks[j]: e(o)
        if G + D < 64:
            ns, ni = divmod(G + D, 8)
            if ns + 1 < NST and base_of(ns + 1) != base_of(ns):
                d = (base_of(ns + 1) - base_of(ns)) & 0xffffffff
                for k in range(r.nsets):
                    pend_addr.append(f"v_add_u32 v{ADDR[k] + ni}, 0x{d:x}, v{ADDR[k] + ni}")
    e("s_nop 7"); e("s_nop 7")
    for j in range(len(r.mfmas)):
        a = ACC[j]
        for q in range(8):
            e(f"v_permlane16_swap_b32 v{a + 2*q}, v{a + 2*q + 1}")
        for q in range(8):
            e(f"v_cvt_pk_bf16_f32 v{a + 2*q}, v{a + 2*q}, v{a + 2*q + 1}")
        for q in range(8):
            row = 8 * (q // 2) + 2 * (q & 1)
            e(f"s_add_u32 s{S_T0}, s{S_OB + j}, {row * ROWS}")
            e(f"buffer_store_dword v{a + 2*q}, v{V_ST}, s[{S_OUT}:{S_OUT+3}], s{S_T0} offen {cfg.store_flags}")
    e("s_endpgm")

def gen(cfg):
    assert base_of(1) == base_of(0)
    e = Emit()
    e(f"s_load_dwordx2 s[{S_X}:{S_X+1}], s[0:1], 0")
    e(f"s_load_dwordx2 s[{S_Q}:{S_Q+1}], s[0:1], 8")
    e(f"s_load_dwordx2 s[{S_SC}:{S_SC+1}], s[0:1], 16")
    e(f"s_load_dwordx2 s[{S_ZR}:{S_ZR+1}], s[0:1], 24")
    e(f"s_load_dwordx2 s[{S_OUT}:{S_OUT+1}], s[0:1], 40")
    e("s_cmp_ge_u32 s2, 256")
    e("s_cbranch_scc1 L_exit")
    e(f"v_lshrrev_b32 v{V_T}, 6, v0")
    e(f"v_and_b32 v{V_LANE}, 63, v0")
    e(f"v_readfirstlane_b32 s{S_WAVE}, v{V_T}")
    for sr, nb in ((S_X, M * ROWX), (S_Q, 64 * ROWQ), (S_SC, 16 * ROWS), (S_ZR, 16 * ROWS), (S_OUT, M * ROWS)):
        e(f"s_mov_b32 s{sr+2}, {nb}")
        e(f"s_mov_b32 s{sr+3}, 0x20000")
    e(f"s_and_b32 s{S_T0}, s2, 7")
    e(f"s_lshr_b32 s{S_T1}, s2, 7")
    e(f"s_lshl_b32 s{S_T0}, s{S_T0}, 1")
    e(f"s_add_u32 s{S_MT}, s{S_T0}, s{S_T1}")
    e(f"s_bfe_u32 s{S_NT}, s2, 0x40003")
    e(f"v_lshrrev_b32 v{V_T}, 3, v{V_LANE}")
    e(f"v_and_b32 v{V_T+1}, 7, v{V_LANE}")
    e(f"v_lshrrev_b32 v{V_T+2}, 1, v{V_T}")
    e(f"v_xor_b32 v{V_T+1}, v{V_T+1}, v{V_T+2}")
    e(f"v_lshlrev_b32 v{V_T+1}, 4, v{V_T+1}")
    e(f"v_lshl_add_u32 v{V_DMA}, v{V_T}, 11, v{V_T+1}")
    e(f"v_xor_b32 v{V_DMA+1}, 64, v{V_DMA}")
    e(f"v_add_u32 v{V_DMA+2}, {16*ROWX - 2048}, v{V_DMA}")
    e(f"v_add_u32 v{V_DMA+1}, {8*ROWX - 1024}, v{V_DMA+1}")
    e(f"v_add_u32 v{V_DMA+3}, {16*ROWX - 2048}, v{V_DMA+1}")
    e(f"s_lshl_b32 s{S_T0}, s{S_MT}, 18")
    e(f"s_and_b32 s{S_T1}, s{S_WAVE}, 3")
    e(f"s_lshl_b32 s{S_T1}, s{S_T1}, 16")
    e(f"s_lshr_b32 s{S_T2}, s{S_WAVE}, 2")
    e(f"s_lshl_b32 s{S_T2}, s{S_T2}, 7")
    e(f"s_add_u32 s{S_XOFF}, s{S_T0}, s{S_T1}")
    e(f"s_add_u32 s{S_XOFF}, s{S_XOFF}, s{S_T2}")
    e(f"s_lshl_b32 s{S_M0B}, s{S_WAVE}, 12")
    e(f"s_mov_b32 m0, s{S_M0B}")
    e("s_waitcnt lgkmcnt(0)")
    for j in range(4):
        e(f"buffer_load_dwordx4 v{V_DMA + j}, s[{S_X}:{S_X+3}], s{S_XOFF} offen offset:{j*1024} lds")
    e(f"v_and_b32 v{V_T}, 15, v{V_LANE}")
    e(f"v_bfe_u32 v{V_T+1}, v{V_LANE}, 4, 1")
    e(f"v_lshl_add_u32 v{V_T+1}, v{V_T}, 1, v{V_T+1}")
    e(f"v_lshrrev_b32 v{V_T+2}, 5, v{V_LANE}")
    e(f"v_mul_u32_u24 v{V_S}, {ROWS}, v{V_T+2}")
    e(f"v_lshl_add_u32 v{V_S}, v{V_T+1}, 1, v{V_S}")
    e(f"v_mul_u32_u24 v{V_W}, {4*ROWQ}, v{V_T+2}")
    e(f"v_lshl_add_u32 v{V_W}, v{V_T+1}, 2, v{V_W}")
    for t in range(1, 4):
        e(f"v_add_u32 v{V_W+t}, {t*ROWQ}, v{V_W}")
    e(f"v_bfe_u32 v{V_T+1}, v{V_LANE}, 4, 1")
    e(f"v_lshl_add_u32 v{V_T+1}, v{V_T+2}, 2, v{V_T+1}")
    e(f"v_mul_u32_u24 v{V_T+1}, {ROWS}, v{V_T+1}")
    e(f"v_lshl_add_u32 v{V_ST}, v{V_T}, 2, v{V_T+1}")
    e(f"v_mov_b32 v{V_C4}, 0x04000400")
    for i in range(4):
        e(f"s_mov_b32 s{S_VSEL+i}, 0x{i | i << 8 | (4+i) << 16 | (4+i) << 24:08x}")
    e(f"s_mov_b32 s{S_M03}, 0x03030303")
    e(f"s_mov_b32 s{S_THREE}, 0x40400000")
    e(f"s_mov_b32 s{S_TLO}, 0x06040200")
    e(f"s_mov_b32 s{S_THI}, 0x07050301")
    e(f"s_mul_i32 s{S_T0}, s{S_NT}, 224")
    e(f"s_mul_i32 s{S_T1}, s{S_MT}, {128 * ROWS}")
    def setcol(c, cb_expr_reg=None, cb=None):
        if cb_expr_reg is not None:
            e(f"s_lshl_b32 s{S_T2}, s{cb_expr_reg}, 5")
            e(f"s_add_u32 s{S_T2}, s{S_T2}, s{S_T0}")
        else:
            e(f"s_add_u32 s{S_T2}, s{S_T0}, {cb * 32}")
        e(f"s_lshl_b32 s{S_SOFF + c}, s{S_T2}, 1")
        e(f"s_lshl_b32 s{S_WOFF + c}, s{S_T2}, 2")
    def setout(j, c, rb):
        e(f"s_add_u32 s{S_OB + j}, s{S_T1}, s{S_SOFF + c}")
        if rb: e(f"s_add_u32 s{S_OB + j}, s{S_OB + j}, {rb * 32 * ROWS}")
    e(f"s_cmp_ge_u32 s{S_WAVE}, 4")
    e("s_cbranch_scc1 L_disp_B")
    setcol(0, cb_expr_reg=S_WAVE)
    for j in range(4): setout(j, 0, j)
    e(f"s_mov_b32 s{S_OB + 4}, 0")
    e("s_branch L_role_A")
    e.label("L_disp_B")
    for w, lab in ((4, "w4"), (5, "w5"), (6, "w6")):
        e(f"s_cmp_eq_u32 s{S_WAVE}, {w}")
        e(f"s_cbranch_scc1 L_disp_{lab}")
    setcol(0, cb=6)
    for j in range(3): setout(j, 0, j + 1)
    e(f"s_mov_b32 s{S_OB + 4}, 4096")
    e("s_branch L_role_X")
    e.label("L_disp_w4")
    setcol(0, cb=4)
    for j in range(3): setout(j, 0, j)
    e(f"s_mov_b32 s{S_OB + 4}, 0")
    e("s_branch L_role_X")
    e.label("L_disp_w5")
    setcol(0, cb=5); setcol(1, cb=4)
    setout(0, 0, 2); setout(1, 0, 3); setout(2, 1, 3)
    e(f"s_mov_b32 s{S_OB + 4}, {3 * 4096}")
    e(f"s_mov_b32 s{S_OB + 5}, {2 * 4096}")
    e("s_branch L_role_Y")
    e.label("L_disp_w6")
    setcol(0, cb=5); setcol(1, cb=6)
    setout(0, 0, 1); setout(1, 0, 0); setout(2, 1, 0)
    e(f"s_mov_b32 s{S_OB + 4}, 0")
    e(f"s_mov_b32 s{S_OB + 5}, 4096")
    e("s_branch L_role_Y")
    e.label("L_exit")
    e("s_endpgm")
    for r in (ROLE_A, ROLE_X, ROLE_Y):
        e.l.append(".p2align 6")
        gen_role(e, r, cfg)
    nv = max(r.nvgpr for r in (ROLE_A, ROLE_X, ROLE_Y))
    nv = max(nv, 129)
    nva = (nv + 3) // 4 * 4
    hdr = open("standalone__weight_only_int_gptq__prompt.s.ref").read().split("; @launch")[0]
    out = hdr + f"; @launch grid=(256,1,1) block=(512,1,1) lds={cfg.lds}\n"
    out += f""".amdgcn_target "amdgcn-amd-amdhsa--gfx950"
.text
.globl {KNAME}
.p2align 8
.type {KNAME},@function
{KNAME}:
"""
    out += "\n".join(e.l) + "\n"
    out += f""".section .rodata,"a"
.p2align 6
.amdhsa_kernel {KNAME}
  .amdhsa_next_free_vgpr {nv}
  .amdhsa_next_free_sgpr 80
  .amdhsa_accum_offset {nva}
  .amdhsa_group_segment_fixed_size 0
  .amdhsa_kernarg_size 64
  .amdhsa_user_sgpr_count 2
  .amdhsa_user_sgpr_kernarg_segment_ptr 1
  .amdhsa_system_sgpr_workgroup_id_x 1
  .amdhsa_float_denorm_mode_32 3
.end_amdhsa_kernel
"""
    return out

if __name__ == "__main__":
    cfg = Cfg()
    for a in sys.argv[2:]:
        k, v = a.split("=", 1)
        setattr(cfg, k, eval(v))
    open(sys.argv[1], "w").write(gen(cfg))
```

```python
import sys
KNAME = "standalone__weight_only_int_gptq__prompt_kernel"
M, N, K = 2048, 3584, 1024
ROWX = K * 2
ROWQ = N * 4
ROWS = N * 2
NST = 8
NSLOT = 5
SLOT = 32768

class Cfg:
    D = 2
    store_flags = "sc1"
    lds = NSLOT * SLOT
    dma_at = {2: 0, 3: 2, 4: 4}
    last_barrier = 5
    prio_lead = 1
    debug = False
    cpf = 0
    prio_lag = 0

S_X, S_Q, S_SC, S_ZR, S_OUT = 16, 20, 24, 28, 32
S_VSEL = 36
S_M03, S_THREE, S_TLO, S_THI = 40, 41, 42, 43
S_WAVE, S_XOFF, S_M0B = 44, 45, 46
S_WOFF = 48
S_SOFF = 50
S_OB = 52
S_T0, S_T1, S_T2, S_T3 = 60, 61, 62, 63
S_MT, S_NT = 64, 65

S_STAMP = 68
class Role:
    def __init__(s, name, ncols, xfr, mfmas, nsets):
        s.name = name; s.ncols = ncols
        s.xfr = xfr
        s.mfmas = mfmas
        s.nsets = nsets
ROLE_A = Role("A", 1, [(0, 0), (0, 4096), (0, 8192), (0, 12288)], [(0, 0), (0, 1), (0, 2), (0, 3)], 1)
ROLE_X = Role("X", 1, [(0, 0), (0, 4096), (0, 8192)], [(0, 0), (0, 1), (0, 2)], 1)
ROLE_Y = Role("Y", 2, [(0, 0), (1, 0)], [(0, 1), (0, 0), (1, 0)], 2)

class Emit:
    def __init__(s):
        s.l = []
        s.vm = []
        s.lg = []
    def __call__(s, t): s.l.append("    " + t)
    def label(s, t): s.l.append(t + ":")
    def stamp(s, cfg, idx, real=False):
        if cfg.debug:
            s(f"{'s_memrealtime' if real else 's_memtime'} s[{S_STAMP + 2*idx}:{S_STAMP + 2*idx + 1}]")
            s.stamped = True
    def vmem(s, t, tag): s(t); s.vm.append(tag)
    def lds(s, t, tag): s(t); s.lg.append(tag)
    def wait_vm(s, tag):
        idx = [i for i, t in enumerate(s.vm) if t == tag]
        if not idx: return
        n = len(s.vm) - 1 - idx[-1]
        s(f"s_waitcnt vmcnt({n})")
        s.vm = s.vm[idx[-1] + 1:]
    def wait_vm_all(s):
        s("s_waitcnt vmcnt(0)"); s.vm = []
    def wait_lg(s, tag):
        idx = [i for i, t in enumerate(s.lg) if t == tag]
        if not idx: return
        n = len(s.lg) - 1 - idx[-1]
        assert n <= 15
        s(f"s_waitcnt lgkmcnt({n})")
        s.lg = s.lg[idx[-1] + 1:]

V_LANE = 1
V_DMA = 2
V_W = 6
V_S = 10
V_C4 = 11
V_ST = 12
V_T = 13
V_PF = 16
V_FREE = 17

def slot_of(st): return st % NSLOT
def base_of(st): return (slot_of(st) // 2) * 65536
def imm_of(st): return (slot_of(st) % 2) * SLOT

def gen_role(e, r, cfg):
    D = cfg.D
    nx = len(r.xfr)
    p = V_FREE
    def alloc(n, al=1):
        nonlocal p
        p = (p + al - 1) // al * al
        q = p; p += n
        return q
    ADDR = [alloc(8) for _ in range(r.nsets)]
    ACC = [alloc(16, 4) for _ in r.mfmas]
    XF = [[alloc(4, 4) for _ in range(nx)] for _ in range(D)]
    WF = [[alloc(4, 4) for _ in range(r.ncols)] for _ in range(2)]
    WD = [[alloc(4, 2) for _ in range(r.ncols)] for _ in range(3)]
    SZ = [[alloc(2) for _ in range(r.ncols)] for _ in range(3)]
    TB = [[alloc(2) for _ in range(r.ncols)] for _ in range(2)]
    W2 = [alloc(2, 2) for _ in range(r.ncols)]
    VV = [alloc(4, 2) for _ in range(r.ncols)]
    TT = [alloc(4) for _ in range(r.ncols)]
    assert p <= 256, p
    r.nvgpr = p

    def dma(st):
        e(f"s_add_u32 m0, s{S_M0B}, {slot_of(st) * SLOT}")
        e(f"s_add_u32 s{S_T0}, s{S_XOFF}, {st * 256}")
        for j in range(4):
            e.vmem(f"buffer_load_dwordx4 v{V_DMA + j}, s[{S_X}:{S_X+3}], s{S_T0} offen offset:{j*1024} lds", ("dma", st))
    def wload(st):
        for c in range(r.ncols):
            e(f"s_add_u32 s{S_T1}, s{S_SOFF + c}, {st * 2 * ROWS}")
            e(f"s_add_u32 s{S_T2}, s{S_WOFF + c}, {st * 8 * ROWQ}")
            sz = SZ[st % 3][c]
            e.vmem(f"buffer_load_short_d16_hi v{sz}, v{V_S}, s[{S_SC}:{S_SC+3}], s{S_T1} offen", ("sz", st))
            e.vmem(f"buffer_load_short_d16_hi v{sz+1}, v{V_S}, s[{S_ZR}:{S_ZR+3}], s{S_T1} offen", ("sz", st))
            for t in range(4):
                e.vmem(f"buffer_load_dword v{WD[st % 3][c] + t}, v{V_W + t}, s[{S_Q}:{S_Q+3}], s{S_T2} offen", ("w", st))
    def table_ops(st, c):
        s_, z_ = SZ[st % 3][c], SZ[st % 3][c] + 1
        t = TT[c]; tb = TB[st % 2][c]
        return [f"v_mul_f32 v{t}, v{z_}, v{s_}",
                f"v_sub_f32 v{t+1}, v{s_}, v{t}",
                f"v_fma_f32 v{t+2}, 2.0, v{s_}, -v{t}",
                f"v_fma_f32 v{t+3}, s{S_THREE}, v{s_}, -v{t}",
                f"v_cvt_pk_bf16_f32 v{t}, -v{t}, v{t+1}",
                f"v_cvt_pk_bf16_f32 v{t+2}, v{t+2}, v{t+3}",
                f"v_perm_b32 v{tb}, v{t+2}, v{t}, s{S_TLO}",
                f"v_perm_b32 v{tb+1}, v{t+2}, v{t}, s{S_THI}"]
    def deq_ops(G, c):
        st, i = divmod(G, 8)
        t, half = i // 2, i & 1
        w = WD[st % 3][c]; v = VV[c]; f = WF[G % 2][c]; tb = TB[st % 2][c]
        o = []
        if i % 4 == 0:
            o.append(f"v_lshrrev_b64 v[{W2[c]}:{W2[c]+1}], 2, v[{w+t}:{w+t+1}]")
        o.append(f"v_perm_b32 v{v}, v{W2[c] + (t & 1)}, v{w+t}, s{S_VSEL + 2*half}")
        o.append(f"v_perm_b32 v{v+1}, v{W2[c] + (t & 1)}, v{w+t}, s{S_VSEL + 2*half + 1}")
        o.append(f"v_and_or_b32 v{f}, v{v}, s{S_M03}, v{V_C4}")
        o.append(f"v_lshrrev_b64 v[{v+2}:{v+3}], 4, v[{v}:{v+1}]")
        o.append(f"v_and_or_b32 v{f+2}, v{v+1}, s{S_M03}, v{V_C4}")
        o.append(f"v_perm_b32 v{f}, v{tb+1}, v{tb}, v{f}")
        o.append(f"v_and_or_b32 v{f+1}, v{v+2}, s{S_M03}, v{V_C4}")
        o.append(f"v_perm_b32 v{f+2}, v{tb+1}, v{tb}, v{f+2}")
        o.append(f"v_and_or_b32 v{f+3}, v{v+3}, s{S_M03}, v{V_C4}")
        o.append(f"v_perm_b32 v{f+1}, v{tb+1}, v{tb}, v{f+1}")
        o.append(f"v_perm_b32 v{f+3}, v{tb+1}, v{tb}, v{f+3}")
        return o
    def xread(G, xi):
        st, i = divmod(G, 8)
        aset, imm = r.xfr[xi]
        x = XF[G % D][xi]
        e.lds(f"ds_read_b128 v[{x}:{x+3}], v{ADDR[aset] + i} offset:{imm + imm_of(st)}", ("x", G, xi))

    e.label(f"L_role_{r.name}")
    if r.name != "A" and cfg.prio_lag: e(f"s_setprio {cfg.prio_lag}")
    e.vm = [("dma", 0)] * 4
    e.lg = []
    for a in SZ:
        for q in a:
            e(f"v_mov_b32 v{q}, 0"); e(f"v_mov_b32 v{q+1}, 0")
    wload(0)
    dma(1)
    wload(1)
    e(f"v_lshrrev_b32 v{V_T}, 5, v{V_LANE}")
    e(f"v_and_b32 v{V_T+1}, 31, v{V_LANE}")
    e(f"v_lshlrev_b32 v{V_T}, 14, v{V_T}")
    e(f"v_lshl_add_u32 v{V_T}, v{V_T+1}, 7, v{V_T}")
    e(f"v_bfe_u32 v{V_T+1}, v{V_T+1}, 1, 3")
    e(f"v_lshl_add_u32 v{V_T}, v{V_T+1}, 4, v{V_T}")
    for k in range(r.nsets):
        e(f"v_add_u32 v{ADDR[k]}, s{S_OB + 4 + k}, v{V_T}")
        for i in range(1, 8):
            e(f"v_xor_b32 v{ADDR[k] + i}, {i * 16}, v{ADDR[k]}")
    e.wait_vm(("w", 0))
    for c in range(r.ncols):
        for o in table_ops(0, c): e(o)
    for c in range(r.ncols):
        for o in deq_ops(0, c): e(o)
    e.wait_vm(("dma", 0))
    e.stamp(cfg, 2)
    e("s_barrier")
    e.stamp(cfg, 3)
    if cfg.debug: e("s_waitcnt lgkmcnt(0)")
    for G in range(D):
        for xi in sorted(range(nx), key=lambda x: [m[1] for m in r.mfmas].index(x)):
            xread(G, xi)
    pend_addr = []
    for G in range(64):
        st, i = divmod(G, 8)
        valu = []
        pre_wait = []
        if st + 1 < NST and 2 <= i < 6:
            for c in range(r.ncols):
                valu += table_ops(st + 1, c)[(i - 2) * 2:(i - 2) * 2 + 2]
            if i == 2: pre_wait.append(("w", st + 1))
        valu += pend_addr; pend_addr = []
        if G + 1 < 64:
            for c in range(r.ncols):
                valu += deq_ops(G + 1, c)
        nm = len(r.mfmas)
        chunks = [valu[len(valu) * j // nm: len(valu) * (j + 1) // nm] for j in range(nm)]
        vmem_here = []
        if i == 0 and st + 2 < NST: vmem_here.append(("w", st + 2))
        for s2, g2 in cfg.dma_at.items():
            if g2 == G: vmem_here.append(("d", s2))
        first_read = True
        if cfg.debug and i == 0 and st > 0:
            e.stamp(cfg, 3 + st); e("s_waitcnt lgkmcnt(0)"); e.lg = []
        for j, (c, xi) in enumerate(r.mfmas):
            e.wait_lg(("x", G, xi))
            x = XF[G % D][xi]; f = WF[G % 2][c]; a = ACC[j]
            srcc = "0" if G == 0 else f"v[{a}:{a+15}]"
            if j == 0 and G > 0:
                e("s_nop 0" if "s_waitcnt" in e.l[-1] else "s_nop 1")
            e(f"v_mfma_f32_32x32x16_bf16 v[{a}:{a+15}], v[{x}:{x+3}], v[{f}:{f+3}], {srcc}")
            lastuse = all(m[1] != xi for m in r.mfmas[j + 1:])
            if lastuse and G + D < 64:
                ns, ni = divmod(G + D, 8)
                if ni == 0 and first_read and ns <= cfg.last_barrier:
                    if ns == cfg.last_barrier:
                        last = [t for t in e.vm if t[0] == "dma"]
                        if last: e.wait_vm(last[-1])
                    else:
                        e.wait_vm(("dma", ns))
                    e("s_barrier")
                    if ns + 3 >= NSLOT and ns + 3 < NST: dma(ns + 3)
                    if ns == cfg.last_barrier and r.name == "A" and cfg.prio_lead: e(f"s_setprio {cfg.prio_lead}")
                first_read = False
                xread(G + D, xi)
            if j == 0:
                for kind, s2 in vmem_here:
                    if kind == "w": wload(s2)
                    else: dma(s2)
                for t in pre_wait: e.wait_vm(t)
            for o in chunks[j]: e(o)
        if G + D < 64:
            ns, ni = divmod(G + D, 8)
            if ns + 1 < NST and base_of(ns + 1) != base_of(ns):
                d = (base_of(ns + 1) - base_of(ns)) & 0xffffffff
                for k in range(r.nsets):
                    pend_addr.append(f"v_add_u32 v{ADDR[k] + ni}, 0x{d:x}, v{ADDR[k] + ni}")
    e("s_nop 7"); e("s_nop 7")
    e.stamp(cfg, 11)
    for j in range(len(r.mfmas)):
        a = ACC[j]
        for q in range(8):
            e(f"v_permlane16_swap_b32 v{a + 2*q}, v{a + 2*q + 1}")
        for q in range(8):
            e(f"v_cvt_pk_bf16_f32 v{a + 2*q}, v{a + 2*q}, v{a + 2*q + 1}")
        for q in range(8):
            row = 8 * (q // 2) + 2 * (q & 1)
            e(f"s_add_u32 s{S_T0}, s{S_OB + j}, {row * ROWS}")
            e(f"buffer_store_dword v{a + 2*q}, v{V_ST}, s[{S_OUT}:{S_OUT+3}], s{S_T0} offen {cfg.store_flags}")
    if cfg.debug:
        e.stamp(cfg, 12)
        e("s_waitcnt vmcnt(0)")
        e.stamp(cfg, 13)
        e.stamp(cfg, 14, True)
        e(f"s_getreg_b32 s{S_STAMP + 30}, hwreg(HW_REG_HW_ID)")
        e(f"s_load_dwordx2 s[{S_X}:{S_X+1}], s[0:1], 56")
        e("s_waitcnt lgkmcnt(0)")
        e(f"s_lshl_b32 s{S_T0}, s2, 3")
        e(f"s_add_u32 s{S_T0}, s{S_T0}, s{S_WAVE}")
        e(f"s_lshl_b32 s{S_T0}, s{S_T0}, 6")
        e(f"v_mov_b32 v{V_T}, 0")
        for q in range(16):
            e(f"v_mov_b32 v{V_T+1}, s{S_STAMP + 2*q}")
            e(f"buffer_store_dword v{V_T+1}, v{V_T}, s[{S_X}:{S_X+3}], s{S_T0} offen offset:{4*q}")
    e("s_endpgm")

def gen(cfg):
    assert base_of(1) == base_of(0)
    e = Emit()
    e.stamp(cfg, 0, True)
    e.stamp(cfg, 1)
    e(f"s_load_dwordx2 s[{S_X}:{S_X+1}], s[0:1], 0")
    e(f"s_load_dwordx2 s[{S_Q}:{S_Q+1}], s[0:1], 8")
    e(f"s_load_dwordx2 s[{S_SC}:{S_SC+1}], s[0:1], 16")
    e(f"s_load_dwordx2 s[{S_ZR}:{S_ZR+1}], s[0:1], 24")
    e(f"s_load_dwordx2 s[{S_OUT}:{S_OUT+1}], s[0:1], 40")
    e("s_cmp_ge_u32 s2, 256")
    e("s_cbranch_scc1 L_exit")
    if cfg.cpf:
        e("s_getpc_b64 s[4:5]")
        e.label("L_pc")
        e(f"v_lshlrev_b32 v{V_T}, 7, v0")
        e(f"v_min_u32 v{V_T}, L_end-L_pc-4, v{V_T}")
        e(f"global_load_dword v{V_PF}, v{V_T}, s[4:5]")
    e(f"v_lshrrev_b32 v{V_T}, 6, v0")
    e(f"v_and_b32 v{V_LANE}, 63, v0")
    e(f"v_readfirstlane_b32 s{S_WAVE}, v{V_T}")
    for sr, nb in ((S_X, M * ROWX), (S_Q, 64 * ROWQ), (S_SC, 16 * ROWS), (S_ZR, 16 * ROWS), (S_OUT, M * ROWS)):
        e(f"s_mov_b32 s{sr+2}, {nb}")
        e(f"s_mov_b32 s{sr+3}, 0x20000")
    e(f"s_and_b32 s{S_T0}, s2, 7")
    e(f"s_lshr_b32 s{S_T1}, s2, 7")
    e(f"s_lshl_b32 s{S_T0}, s{S_T0}, 1")
    e(f"s_add_u32 s{S_MT}, s{S_T0}, s{S_T1}")
    e(f"s_bfe_u32 s{S_NT}, s2, 0x40003")
    e(f"v_lshrrev_b32 v{V_T}, 3, v{V_LANE}")
    e(f"v_and_b32 v{V_T+1}, 7, v{V_LANE}")
    e(f"v_lshrrev_b32 v{V_T+2}, 1, v{V_T}")
    e(f"v_xor_b32 v{V_T+1}, v{V_T+1}, v{V_T+2}")
    e(f"v_lshlrev_b32 v{V_T+1}, 4, v{V_T+1}")
    e(f"v_lshl_add_u32 v{V_DMA}, v{V_T}, 11, v{V_T+1}")
    e(f"v_xor_b32 v{V_DMA+1}, 64, v{V_DMA}")
    e(f"v_add_u32 v{V_DMA+2}, {16*ROWX - 2048}, v{V_DMA}")
    e(f"v_add_u32 v{V_DMA+1}, {8*ROWX - 1024}, v{V_DMA+1}")
    e(f"v_add_u32 v{V_DMA+3}, {16*ROWX - 2048}, v{V_DMA+1}")
    e(f"s_lshl_b32 s{S_T0}, s{S_MT}, 18")
    e(f"s_and_b32 s{S_T1}, s{S_WAVE}, 3")
    e(f"s_lshl_b32 s{S_T1}, s{S_T1}, 16")
    e(f"s_lshr_b32 s{S_T2}, s{S_WAVE}, 2")
    e(f"s_lshl_b32 s{S_T2}, s{S_T2}, 7")
    e(f"s_add_u32 s{S_XOFF}, s{S_T0}, s{S_T1}")
    e(f"s_add_u32 s{S_XOFF}, s{S_XOFF}, s{S_T2}")
    e(f"s_lshl_b32 s{S_M0B}, s{S_WAVE}, 12")
    e(f"s_mov_b32 m0, s{S_M0B}")
    e("s_waitcnt lgkmcnt(0)")
    for j in range(4):
        e(f"buffer_load_dwordx4 v{V_DMA + j}, s[{S_X}:{S_X+3}], s{S_XOFF} offen offset:{j*1024} lds")
    e(f"v_and_b32 v{V_T}, 15, v{V_LANE}")
    e(f"v_bfe_u32 v{V_T+1}, v{V_LANE}, 4, 1")
    e(f"v_lshl_add_u32 v{V_T+1}, v{V_T}, 1, v{V_T+1}")
    e(f"v_lshrrev_b32 v{V_T+2}, 5, v{V_LANE}")
    e(f"v_mul_u32_u24 v{V_S}, {ROWS}, v{V_T+2}")
    e(f"v_lshl_add_u32 v{V_S}, v{V_T+1}, 1, v{V_S}")
    e(f"v_mul_u32_u24 v{V_W}, {4*ROWQ}, v{V_T+2}")
    e(f"v_lshl_add_u32 v{V_W}, v{V_T+1}, 2, v{V_W}")
    for t in range(1, 4):
        e(f"v_add_u32 v{V_W+t}, {t*ROWQ}, v{V_W}")
    e(f"v_bfe_u32 v{V_T+1}, v{V_LANE}, 4, 1")
    e(f"v_lshl_add_u32 v{V_T+1}, v{V_T+2}, 2, v{V_T+1}")
    e(f"v_mul_u32_u24 v{V_T+1}, {ROWS}, v{V_T+1}")
    e(f"v_lshl_add_u32 v{V_ST}, v{V_T}, 2, v{V_T+1}")
    e(f"v_mov_b32 v{V_C4}, 0x04000400")
    for i in range(4):
        e(f"s_mov_b32 s{S_VSEL+i}, 0x{i | i << 8 | (4+i) << 16 | (4+i) << 24:08x}")
    e(f"s_mov_b32 s{S_M03}, 0x03030303")
    e(f"s_mov_b32 s{S_THREE}, 0x40400000")
    e(f"s_mov_b32 s{S_TLO}, 0x06040200")
    e(f"s_mov_b32 s{S_THI}, 0x07050301")
    e(f"s_mul_i32 s{S_T0}, s{S_NT}, 224")
    e(f"s_mul_i32 s{S_T1}, s{S_MT}, {128 * ROWS}")
    def setcol(c, cb_expr_reg=None, cb=None):
        if cb_expr_reg is not None:
            e(f"s_lshl_b32 s{S_T2}, s{cb_expr_reg}, 5")
            e(f"s_add_u32 s{S_T2}, s{S_T2}, s{S_T0}")
        else:
            e(f"s_add_u32 s{S_T2}, s{S_T0}, {cb * 32}")
        e(f"s_lshl_b32 s{S_SOFF + c}, s{S_T2}, 1")
        e(f"s_lshl_b32 s{S_WOFF + c}, s{S_T2}, 2")
    def setout(j, c, rb):
        e(f"s_add_u32 s{S_OB + j}, s{S_T1}, s{S_SOFF + c}")
        if rb: e(f"s_add_u32 s{S_OB + j}, s{S_OB + j}, {rb * 32 * ROWS}")
    e(f"s_cmp_ge_u32 s{S_WAVE}, 4")
    e("s_cbranch_scc1 L_disp_B")
    setcol(0, cb_expr_reg=S_WAVE)
    for j in range(4): setout(j, 0, j)
    e(f"s_mov_b32 s{S_OB + 4}, 0")
    e("s_branch L_role_A")
    e.label("L_disp_B")
    for w, lab in ((4, "w4"), (5, "w5"), (6, "w6")):
        e(f"s_cmp_eq_u32 s{S_WAVE}, {w}")
        e(f"s_cbranch_scc1 L_disp_{lab}")
    setcol(0, cb=6)
    for j in range(3): setout(j, 0, j + 1)
    e(f"s_mov_b32 s{S_OB + 4}, 4096")
    e("s_branch L_role_X")
    e.label("L_disp_w4")
    setcol(0, cb=4)
    for j in range(3): setout(j, 0, j)
    e(f"s_mov_b32 s{S_OB + 4}, 0")
    e("s_branch L_role_X")
    e.label("L_disp_w5")
    setcol(0, cb=5); setcol(1, cb=4)
    setout(0, 0, 2); setout(1, 0, 3); setout(2, 1, 3)
    e(f"s_mov_b32 s{S_OB + 4}, {3 * 4096}")
    e(f"s_mov_b32 s{S_OB + 5}, {2 * 4096}")
    e("s_branch L_role_Y")
    e.label("L_disp_w6")
    setcol(0, cb=5); setcol(1, cb=6)
    setout(0, 0, 1); setout(1, 0, 0); setout(2, 1, 0)
    e(f"s_mov_b32 s{S_OB + 4}, 0")
    e(f"s_mov_b32 s{S_OB + 5}, 4096")
    e("s_branch L_role_Y")
    e.label("L_exit")
    e("s_endpgm")
    for r in (ROLE_A, ROLE_X, ROLE_Y):
        e.l.append(".p2align 6")
        gen_role(e, r, cfg)
    e.label("L_end")
    nv = max(r.nvgpr for r in (ROLE_A, ROLE_X, ROLE_Y))
    nv = max(nv, 129)
    nva = (nv + 3) // 4 * 4
    hdr = open("standalone__weight_only_int_gptq__prompt.s.ref").read().split("; @launch")[0]
    out = hdr + f"; @launch grid=(256,1,1) block=(512,1,1) lds={cfg.lds}\n"
    out += f""".amdgcn_target "amdgcn-amd-amdhsa--gfx950"
.text
.globl {KNAME}
.p2align 8
.type {KNAME},@function
{KNAME}:
"""
    out += "\n".join(e.l) + "\n"
    out += f""".section .rodata,"a"
.p2align 6
.amdhsa_kernel {KNAME}
  .amdhsa_next_free_vgpr {nv}
  .amdhsa_next_free_sgpr {102 if cfg.debug else 80}
  .amdhsa_accum_offset {nva}
  .amdhsa_group_segment_fixed_size 0
  .amdhsa_kernarg_size 64
  .amdhsa_user_sgpr_count 2
  .amdhsa_user_sgpr_kernarg_segment_ptr 1
  .amdhsa_system_sgpr_workgroup_id_x 1
  .amdhsa_float_denorm_mode_32 3
.end_amdhsa_kernel
"""
    return out

if __name__ == "__main__":
    cfg = Cfg()
    for a in sys.argv[2:]:
        k, v = a.split("=", 1)
        setattr(cfg, k, eval(v))
    open(sys.argv[1], "w").write(gen(cfg))
```

```python
import sys
KNAME = "standalone__weight_only_int_gptq__prompt_kernel"
M, N, K = 2048, 3584, 1024
ROWX = K * 2
ROWQ = N * 4
ROWS = N * 2
NST = 8
NSLOT = 5
SLOT = 32768
NSTEP = 32

class Cfg:
    NXB = 8
    store_flags = "sc1"
    lds = NSLOT * SLOT
    dma_at = {1: -1, 2: 0, 3: 1, 4: 2}
    last_barrier = 5
    prio_lead = 1
    prio_lag = 0
    debug = False
    cpf = 1
    waitgrp = 1
    spin = 0
    amp = None
    rot = 1

S_X, S_Q, S_SC, S_ZR, S_OUT = 16, 20, 24, 28, 32
S_VSEL = 36
S_M03, S_THREE, S_TLO, S_THI = 40, 41, 42, 43
S_WAVE, S_XOFF, S_M0B = 44, 45, 46
S_WOFF, S_SOFF, S_OB = 48, 49, 50
S_T0, S_T1, S_T2, S_T3 = 60, 61, 62, 63
S_MT, S_NT = 64, 65
S_ROT = 47
S_STAMP = 68

class Emit:
    def __init__(s):
        s.l = []; s.vm = []; s.lg = []
    def __call__(s, t): s.l.append("    " + t)
    def label(s, t): s.l.append(t + ":")
    def stamp(s, cfg, idx, real=False):
        if cfg.amp == idx: s("s_memrealtime s[70:71]")
        if cfg.debug:
            s(f"{'s_memrealtime' if real else 's_memtime'} s[{S_STAMP + 2*idx}:{S_STAMP + 2*idx + 1}]")
    def vmem(s, t, tag): s(t); s.vm.append(tag)
    def lds(s, t, tag): s(t); s.lg.append(tag)
    def wait_vm(s, tag):
        idx = [i for i, t in enumerate(s.vm) if t == tag]
        if not idx: return
        n = len(s.vm) - 1 - idx[-1]
        assert n < 64
        s(f"s_waitcnt vmcnt({n})")
        s.vm = s.vm[idx[-1] + 1:]
    def wait_lg(s, tag):
        idx = [i for i, t in enumerate(s.lg) if t == tag]
        if not idx: return
        n = len(s.lg) - 1 - idx[-1]
        assert n <= 15
        s(f"s_waitcnt lgkmcnt({n})")
        s.lg = s.lg[idx[-1] + 1:]

def slot_of(st): return st % NSLOT
def base_of(st): return (slot_of(st) // 2) * 65536
def imm_of(st): return (slot_of(st) % 2) * SLOT

def gen(cfg):
    e = Emit()
    p = 1
    def alloc(n, al=1):
        nonlocal p
        p = (p + al - 1) // al * al
        q = p; p += n
        return q
    V_LANE = alloc(1); V_DMA = alloc(4); V_W = alloc(2); V_S = alloc(1); V_C4 = alloc(1); V_ST = alloc(1)
    V_T = alloc(3); V_PF = alloc(1)
    ADDR = alloc(4)
    ACC = [[alloc(4, 4) for b in range(2)] for rb in range(8)]
    XF = [alloc(4, 4) for _ in range(cfg.NXB)]
    WF = [[alloc(4, 4) for b in range(2)] for _ in range(2)]
    WD = [[alloc(2, 2) for u in range(2)] for _ in range(3)]
    SZ = [alloc(2) for _ in range(2)]
    TB = [[[alloc(2) for b in range(2)] for par in range(2)] for _ in range(2)]
    W2 = alloc(2, 2)
    VV = [alloc(4, 2) for b in range(2)]
    TT = alloc(6)
    nv = p
    assert p <= 256

    def dma(st, first=False):
        if not first:
            e(f"s_add_u32 m0, s{S_M0B}, {slot_of(st) * SLOT}")
            e(f"s_xor_b32 s{S_T0}, s{S_XOFF}, {st * 256}")
        so = S_XOFF if first else S_T0
        for j in range(4):
            e.vmem(f"buffer_load_dwordx4 v{V_DMA + j}, s[{S_X}:{S_X+3}], s{so} offen offset:{j*1024} lds", ("dma", st))
    def wload(st):
        so = S_T2
        e(f"s_xor_b32 s{S_T2}, s{S_ROT}, {st}")
        e(f"s_mul_i32 s{S_T2}, s{S_T2}, {8 * ROWQ}")
        e(f"s_add_u32 s{S_T2}, s{S_T2}, s{S_WOFF}")
        for u in range(2):
            w = WD[st % 3][u]
            e.vmem(f"buffer_load_dwordx2 v[{w}:{w+1}], v{V_W + u}, s[{S_Q}:{S_Q+3}], s{so} offen", ("w", st))
    def szload(J):
        so = S_T1
        e(f"s_xor_b32 s{S_T1}, s{S_ROT}, {2 * J}")
        e(f"s_lshr_b32 s{S_T1}, s{S_T1}, 1")
        e(f"s_mul_i32 s{S_T1}, s{S_T1}, {4 * ROWS}")
        e(f"s_add_u32 s{S_T1}, s{S_T1}, s{S_SOFF}")
        e.vmem(f"buffer_load_dword v{SZ[J % 2]}, v{V_S}, s[{S_SC}:{S_SC+3}], s{so} offen", ("sz", J))
        e.vmem(f"buffer_load_dword v{SZ[J % 2] + 1}, v{V_S}, s[{S_ZR}:{S_ZR+3}], s{so} offen", ("sz", J))
    def table_ops(J):
        o = []
        sz = SZ[J % 2]; t = TT; s_, z_ = TT + 4, TT + 5
        for b in range(2):
            t0 = TB[J % 2][0][b]; t1 = TB[J % 2][1][b]
            if b == 0:
                o += [f"v_lshlrev_b32 v{s_}, 16, v{sz}", f"v_lshlrev_b32 v{z_}, 16, v{sz+1}"]
            else:
                o += [f"v_and_b32 v{s_}, 0xffff0000, v{sz}", f"v_and_b32 v{z_}, 0xffff0000, v{sz+1}"]
            o += [f"v_mul_f32 v{t}, v{z_}, v{s_}",
                  f"v_sub_f32 v{t+1}, v{s_}, v{t}",
                  f"v_fma_f32 v{t+2}, 2.0, v{s_}, -v{t}",
                  f"v_fma_f32 v{t+3}, s{S_THREE}, v{s_}, -v{t}",
                  f"v_cvt_pk_bf16_f32 v{t}, -v{t}, v{t+1}",
                  f"v_cvt_pk_bf16_f32 v{t+2}, v{t+2}, v{t+3}",
                  f"v_perm_b32 v{t0}, v{t+2}, v{t}, s{S_TLO}",
                  f"v_perm_b32 v{t1}, v{t+2}, v{t}, s{S_TLO}",
                  f"v_perm_b32 v{t0+1}, v{t+2}, v{t}, s{S_THI}",
                  f"v_perm_b32 v{t1+1}, v{t+2}, v{t}, s{S_THI}"]
        for b in range(2):
            t0 = TB[J % 2][0][b]; t1 = TB[J % 2][1][b]
            o += [f"v_permlane16_swap_b32 v{t0}, v{t1}", f"v_permlane16_swap_b32 v{t0+1}, v{t1+1}"]
        return o
    def deq_ops(G):
        st, j = divmod(G, 4)
        u, half = j >> 1, j & 1
        w = WD[st % 3][u]
        o = []
        if half == 0:
            o.append(f"v_lshrrev_b64 v[{W2}:{W2+1}], 2, v[{w}:{w+1}]")
        for b in range(2):
            v = VV[b]; f = WF[G % 2][b]; tb = TB[(st // 2) % 2][st % 2][b]
            o.append(f"v_perm_b32 v{v}, v{W2 + b}, v{w+b}, s{S_VSEL + 2*half}")
            o.append(f"v_perm_b32 v{v+1}, v{W2 + b}, v{w+b}, s{S_VSEL + 2*half + 1}")
            o.append(f"v_and_or_b32 v{f}, v{v}, s{S_M03}, v{V_C4}")
            o.append(f"v_lshrrev_b64 v[{v+2}:{v+3}], 4, v[{v}:{v+1}]")
            o.append(f"v_and_or_b32 v{f+2}, v{v+1}, s{S_M03}, v{V_C4}")
            o.append(f"v_perm_b32 v{f}, v{tb+1}, v{tb}, v{f}")
            o.append(f"v_and_or_b32 v{f+1}, v{v+2}, s{S_M03}, v{V_C4}")
            o.append(f"v_perm_b32 v{f+2}, v{tb+1}, v{tb}, v{f+2}")
            o.append(f"v_and_or_b32 v{f+3}, v{v+3}, s{S_M03}, v{V_C4}")
            o.append(f"v_perm_b32 v{f+1}, v{tb+1}, v{tb}, v{f+1}")
            o.append(f"v_perm_b32 v{f+3}, v{tb+1}, v{tb}, v{f+3}")
        return o
    def xread(R):
        G, rb = divmod(R, 8)
        st, j = divmod(G, 4)
        x = XF[R % cfg.NXB]
        e.lds(f"ds_read_b128 v[{x}:{x+3}], v{ADDR + j} offset:{rb * 2048 + imm_of(st)}", ("x", R))

    e.stamp(cfg, 0, True)
    if cfg.spin: e("s_memrealtime s[66:67]")
    e.stamp(cfg, 1, cfg.debug == 2)
    e(f"s_load_dwordx2 s[{S_SC}:{S_SC+1}], s[0:1], 16")
    e(f"s_load_dwordx2 s[{S_ZR}:{S_ZR+1}], s[0:1], 24")
    e(f"s_load_dwordx2 s[{S_Q}:{S_Q+1}], s[0:1], 8")
    e(f"s_load_dwordx2 s[{S_X}:{S_X+1}], s[0:1], 0")
    e(f"s_load_dwordx2 s[{S_OUT}:{S_OUT+1}], s[0:1], 40")
    e("s_cmp_ge_u32 s2, 224")
    e("s_cbranch_scc1 L_exit")
    if cfg.cpf:
        e("s_getpc_b64 s[4:5]")
        e.label("L_pc")
        e(f"v_lshlrev_b32 v{V_T}, 7, v0")
        e(f"v_cmp_gt_u32 vcc, L_end-L_pc, v{V_T}")
        e("s_and_saveexec_b64 s[6:7], vcc")
        e("s_cbranch_execz L_nopf")
        e(f"global_load_dword v{V_PF}, v{V_T}, s[4:5]")
        e.label("L_nopf")
        e("s_mov_b64 exec, s[6:7]")
    e(f"v_lshrrev_b32 v{V_T}, 6, v0")
    e(f"v_and_b32 v{V_LANE}, 63, v0")
    e(f"v_readfirstlane_b32 s{S_WAVE}, v{V_T}")
    for sr, nb in ((S_X, M * ROWX), (S_Q, 64 * ROWQ), (S_SC, 16 * ROWS), (S_ZR, 16 * ROWS), (S_OUT, M * ROWS)):
        e(f"s_mov_b32 s{sr+2}, {nb}")
        e(f"s_mov_b32 s{sr+3}, 0x20000")
    e(f"s_and_b32 s{S_T0}, s2, 7")
    e(f"s_lshr_b32 s{S_NT}, s2, 3")
    e(f"s_lshl_b32 s{S_MT}, s{S_T0}, 1")
    e(f"s_cmp_ge_u32 s{S_NT}, 14")
    e(f"s_cselect_b32 s{S_T1}, 14, 0")
    e(f"s_addc_u32 s{S_MT}, s{S_MT}, 0")
    e(f"s_sub_u32 s{S_NT}, s{S_NT}, s{S_T1}")
    if cfg.rot: e(f"s_and_b32 s{S_ROT}, s{S_NT}, 7")
    else: e(f"s_mov_b32 s{S_ROT}, 0")
    e(f"s_lshl_b32 s{S_T0}, s{S_NT}, 3")
    e(f"s_add_u32 s{S_T0}, s{S_T0}, s{S_WAVE}")
    e(f"s_lshl_b32 s{S_SOFF}, s{S_T0}, 6")
    e(f"s_lshl_b32 s{S_WOFF}, s{S_T0}, 7")
    e(f"v_and_b32 v{V_T}, 15, v{V_LANE}")
    e(f"v_lshrrev_b32 v{V_T+1}, 4, v{V_LANE}")
    e(f"v_mul_u32_u24 v{V_W}, {2 * ROWQ}, v{V_T+1}")
    e(f"v_lshl_add_u32 v{V_W}, v{V_T}, 3, v{V_W}")
    e(f"v_add_u32 v{V_W+1}, {ROWQ}, v{V_W}")
    e(f"v_lshrrev_b32 v{V_T+2}, 5, v{V_LANE}")
    e(f"v_bfe_u32 v{V_S}, v{V_LANE}, 4, 1")
    e(f"s_and_b32 s{S_T3}, s{S_ROT}, 1")
    e(f"v_xor_b32 v{V_S}, s{S_T3}, v{V_S}")
    e(f"v_lshl_add_u32 v{V_S}, v{V_S}, 1, v{V_T+2}")
    e(f"v_mul_u32_u24 v{V_S}, {ROWS}, v{V_S}")
    e(f"v_lshl_add_u32 v{V_S}, v{V_T}, 2, v{V_S}")
    e(f"v_mul_u32_u24 v{V_ST}, {4 * ROWS}, v{V_T+1}")
    e(f"v_lshl_add_u32 v{V_ST}, v{V_T}, 2, v{V_ST}")
    e(f"v_lshrrev_b32 v{V_T}, 3, v{V_LANE}")
    e(f"v_mul_u32_u24 v{V_T+2}, 6, v{V_T+2}")
    e(f"v_bfe_u32 v{V_T+1}, v{V_LANE}, 4, 1")
    e(f"v_or_b32 v{V_T+1}, v{V_T+1}, v{V_T+2}")
    e(f"v_xor_b32 v{V_T+1}, v{V_T+1}, v{V_LANE}")
    e(f"v_and_b32 v{V_T+1}, 7, v{V_T+1}")
    e(f"v_lshlrev_b32 v{V_T+1}, 4, v{V_T+1}")
    e(f"v_lshl_add_u32 v{V_DMA}, v{V_T}, 11, v{V_T+1}")
    for j in range(1, 4):
        e(f"v_add_u32 v{V_DMA+j}, {j * (8*ROWX - 1024)}, v{V_DMA}")
    e(f"s_lshl_b32 s{S_T0}, s{S_MT}, 18")
    e(f"s_and_b32 s{S_T1}, s{S_WAVE}, 3")
    e(f"s_lshl_b32 s{S_T1}, s{S_T1}, 16")
    e(f"s_lshr_b32 s{S_T2}, s{S_WAVE}, 2")
    e(f"s_lshl_b32 s{S_T2}, s{S_T2}, 7")
    e(f"s_add_u32 s{S_XOFF}, s{S_T0}, s{S_T1}")
    e(f"s_add_u32 s{S_XOFF}, s{S_XOFF}, s{S_T2}")
    e(f"s_lshl_b32 s{S_T2}, s{S_ROT}, 8")
    e(f"s_add_u32 s{S_XOFF}, s{S_XOFF}, s{S_T2}")
    e(f"s_lshl_b32 s{S_M0B}, s{S_WAVE}, 12")
    e(f"s_mov_b32 m0, s{S_M0B}")
    e("s_waitcnt lgkmcnt(0)")
    szload(0)
    wload(0)
    dma(0, first=True)
    e(f"v_mov_b32 v{V_C4}, 0x04000400")
    for i in range(4):
        e(f"s_mov_b32 s{S_VSEL+i}, 0x{i | i << 8 | (4+i) << 16 | (4+i) << 24:08x}")
    e(f"s_mov_b32 s{S_M03}, 0x03030303")
    e(f"s_mov_b32 s{S_THREE}, 0x40400000")
    e(f"s_mov_b32 s{S_TLO}, 0x06040200")
    e(f"s_mov_b32 s{S_THI}, 0x07050301")
    e(f"s_mul_i32 s{S_OB}, s{S_MT}, {128 * ROWS}")
    e(f"s_add_u32 s{S_OB}, s{S_OB}, s{S_SOFF}")
    e(f"v_and_b32 v{V_T}, 15, v{V_LANE}")
    e(f"v_bfe_u32 v{V_T+1}, v{V_LANE}, 2, 1")
    e(f"v_mul_u32_u24 v{V_T+1}, 6, v{V_T+1}")
    e(f"v_bfe_u32 v{V_T+2}, v{V_LANE}, 1, 1")
    e(f"v_or_b32 v{V_T+1}, v{V_T+1}, v{V_T+2}")
    e(f"v_bfe_u32 v{V_T+2}, v{V_LANE}, 4, 1")
    e(f"v_lshlrev_b32 v{V_T+2}, 2, v{V_T+2}")
    e(f"v_xor_b32 v{V_T+1}, v{V_T+1}, v{V_T+2}")
    e(f"v_lshlrev_b32 v{V_T+1}, 4, v{V_T+1}")
    e(f"v_lshl_add_u32 v{V_T+1}, v{V_T}, 7, v{V_T+1}")
    e(f"v_lshrrev_b32 v{V_T+2}, 5, v{V_LANE}")
    e(f"v_lshl_add_u32 v{ADDR}, v{V_T+2}, 14, v{V_T+1}")
    for j in range(1, 4):
        e(f"v_xor_b32 v{ADDR + j}, {j * 16}, v{ADDR}")
    if cfg.prio_lag:
        e(f"s_cmp_lt_u32 s{S_WAVE}, 4")
        e("s_cbranch_scc1 L_noprio0")
        e(f"s_setprio {cfg.prio_lag}")
        e.label("L_noprio0")
    e.wait_vm(("sz", 0))
    szload(1)
    wload(1)
    for s2, g2 in cfg.dma_at.items():
        if g2 == -1: dma(s2)
    to = table_ops(0)
    for o in to[:-1]: e(o)
    e("s_nop 0")
    e(to[-1])
    e.wait_vm(("w", 0))
    for o in deq_ops(0): e(o)
    e.wait_vm(("dma", 0))
    e.stamp(cfg, 2, cfg.debug == 2)
    e("s_barrier")
    e.stamp(cfg, 3, cfg.debug == 2)
    for R in range(cfg.NXB): xread(R)
    pend_addr = []
    NR = NSTEP * 8
    for G in range(NSTEP):
        st, j = divmod(G, 4)
        valu = []; pre_wait = []
        J1 = st // 2 + 1
        ph = G % 8
        if J1 < 4 and 1 <= ph < 7:
            to = table_ops(J1)
            valu += to[(ph - 1) * len(to) // 6:ph * len(to) // 6]
            if ph == 1: pre_wait.append(("sz", J1))
        valu += pend_addr; pend_addr = []
        if G + 1 < NSTEP:
            valu += deq_ops(G + 1)
            if j == 3: pre_wait.append(("w", st + 1))
        nm = 16
        wts = [2, 1] * 8
        tot = sum(wts); acc_ = 0; chunks = []; pos = 0
        for k in range(nm):
            acc_ += wts[k]
            end = (len(valu) * acc_ + tot - 1) // tot if k < nm - 1 else len(valu)
            chunks.append(valu[pos:end]); pos = end
        vmem_here = []
        if j == 0 and st + 2 < NST: vmem_here.append(("w", st + 2))
        if G % 8 == 4 and st // 2 + 2 < 4 + 0: vmem_here.append(("s", st // 2 + 2))
        for s2, g2 in cfg.dma_at.items():
            if g2 == G: vmem_here.append(("d", s2))
        if j == 0 and st > 0:
            e.stamp(cfg, 3 + st, cfg.debug == 2)
        for k in range(nm):
            rb, b = divmod(k, 2)
            R = G * 8 + rb
            if b == 0 and rb % cfg.waitgrp == 0:
                e.wait_lg(("x", R + cfg.waitgrp - 1))
            x = XF[R % cfg.NXB]; f = WF[G % 2][b]; a = ACC[rb][b]
            srcc = "0" if G == 0 else f"v[{a}:{a+3}]"
            e(f"v_mfma_f32_16x16x32_bf16 v[{a}:{a+3}], v[{x}:{x+3}], v[{f}:{f+3}], {srcc}")
            if b == 1 and R + cfg.NXB < NR:
                R2 = R + cfg.NXB
                if R2 % 32 == 0:
                    ns = R2 // 32
                    if ns <= cfg.last_barrier:
                        if ns == cfg.last_barrier:
                            last = [t for t in e.vm if t[0] == "dma"]
                            if last: e.wait_vm(last[-1])
                        else:
                            e.wait_vm(("dma", ns))
                        e("s_barrier")
                        if ns + 3 >= NSLOT and ns + 3 < NST: dma(ns + 3)
                        if ns == cfg.last_barrier and cfg.prio_lead:
                            e(f"s_cmp_ge_u32 s{S_WAVE}, 4")
                            e("s_cbranch_scc1 L_noprio1")
                            e(f"s_setprio {cfg.prio_lead}")
                            e.label("L_noprio1")
                xread(R2)
                if R2 % 8 == 7:
                    ns, nj = divmod(R2 // 8, 4)
                    if ns + 1 < NST and base_of(ns + 1) != base_of(ns):
                        d = (base_of(ns + 1) - base_of(ns)) & 0xffffffff
                        pend_addr.append(f"v_add_u32 v{ADDR + nj}, 0x{d:x}, v{ADDR + nj}")
            if k == 0:
                for kind, s2 in vmem_here:
                    if kind == "w": wload(s2)
                    elif kind == "s": szload(s2)
                    else: dma(s2)
                for t in pre_wait: e.wait_vm(t)
            for o in chunks[k]: e(o)
    e("s_nop 7")
    e.stamp(cfg, 11, cfg.debug == 2)
    for rb in range(8):
        a0, a1 = ACC[rb]
        for r in range(4):
            e(f"v_cvt_pk_bf16_f32 v{a0 + r}, v{a0 + r}, v{a1 + r}")
        for r in range(4):
            e(f"s_add_u32 s{S_T0}, s{S_OB}, {(rb * 16 + r) * ROWS}")
            e(f"buffer_store_dword v{a0 + r}, v{V_ST}, s[{S_OUT}:{S_OUT+3}], s{S_T0} offen {cfg.store_flags}")
    if cfg.spin:
        e("s_waitcnt vmcnt(0) lgkmcnt(0)")
        if cfg.amp is not None:
            e("s_sub_u32 s70, s70, s66")
            e("s_lshl_b32 s70, s70, 3")
            e("s_add_u32 s66, s66, s70")
        e.label("L_spin")
        e("s_memrealtime s[68:69]")
        e("s_waitcnt lgkmcnt(0)")
        e("s_sub_u32 s68, s68, s66")
        e(f"s_cmp_lt_i32 s68, {cfg.spin}")
        e("s_cbranch_scc1 L_spin")
    if cfg.debug:
        e.stamp(cfg, 12, cfg.debug == 2)
        e("s_waitcnt vmcnt(0)")
        e.stamp(cfg, 13, cfg.debug == 2)
        e.stamp(cfg, 14, True)
        e(f"s_getreg_b32 s{S_STAMP + 30}, hwreg(HW_REG_HW_ID)")
        e(f"s_load_dwordx2 s[{S_X}:{S_X+1}], s[0:1], 56")
        e("s_waitcnt lgkmcnt(0)")
        e(f"s_lshl_b32 s{S_T0}, s2, 3")
        e(f"s_add_u32 s{S_T0}, s{S_T0}, s{S_WAVE}")
        e(f"s_lshl_b32 s{S_T0}, s{S_T0}, 6")
        e(f"v_mov_b32 v{V_T}, 0")
        for q in range(16):
            e(f"v_mov_b32 v{V_T+1}, s{S_STAMP + 2*q}")
            e(f"buffer_store_dword v{V_T+1}, v{V_T}, s[{S_X}:{S_X+3}], s{S_T0} offen offset:{4*q}")
    e.label("L_exit")
    e("s_endpgm")
    e.label("L_end")
    check_hazards(e.l)
    nv = max(nv, 129)
    nva = (nv + 3) // 4 * 4
    hdr = open("standalone__weight_only_int_gptq__prompt.s.ref").read().split("; @launch")[0]
    out = hdr + f"; @launch grid=(224,1,1) block=(512,1,1) lds={cfg.lds}\n"
    out += f""".amdgcn_target "amdgcn-amd-amdhsa--gfx950"
.text
.globl {KNAME}
.p2align 8
.type {KNAME},@function
{KNAME}:
"""
    out += "\n".join(e.l) + "\n"
    out += f""".section .rodata,"a"
.p2align 6
.amdhsa_kernel {KNAME}
  .amdhsa_next_free_vgpr {nv}
  .amdhsa_next_free_sgpr {102 if cfg.debug else 80}
  .amdhsa_accum_offset {nva}
  .amdhsa_group_segment_fixed_size 0
  .amdhsa_kernarg_size 64
  .amdhsa_user_sgpr_count 2
  .amdhsa_user_sgpr_kernarg_segment_ptr 1
  .amdhsa_system_sgpr_workgroup_id_x 1
  .amdhsa_float_denorm_mode_32 3
.end_amdhsa_kernel
"""
    return out

import re
def regs(tok):
    tok = tok.strip().lstrip("-")
    m = re.fullmatch(r"v\[(\d+):(\d+)\]", tok)
    if m: return set(range(int(m.group(1)), int(m.group(2)) + 1))
    m = re.fullmatch(r"v(\d+)", tok)
    if m: return {int(m.group(1))}
    return set()
def check_hazards(lines):
    ins = []
    for l in lines:
        t = l.strip()
        if not t or t.endswith(":") or t.startswith("."): continue
        op, _, rest = t.partition(" ")
        ops = [x for x in rest.split(",")]
        ins.append((op, ops, t))
    def states(i, j):
        n = 0
        for k in range(i + 1, j):
            n += int(ins[k][1][0]) + 1 if ins[k][0] == "s_nop" else 1
        return n
    for j, (op, ops, t) in enumerate(ins):
        isv = op.startswith("v_")
        rd = set(); wr = set()
        if op.startswith("v_mfma"):
            rd = regs(ops[1]) | regs(ops[2]) | regs(ops[3]); wr = regs(ops[0])
        elif op.startswith("v_permlane"):
            rd = regs(ops[0]) | regs(ops[1]); wr = rd
        elif isv:
            wr = regs(ops[0]); rd = set().union(*[regs(x.split()[0] if x.strip() else "") for x in ops[1:]]) if len(ops) > 1 else set()
        elif op.startswith("buffer_store") or op.startswith("ds_write"):
            rd = regs(ops[0]) | regs(ops[1].split()[0])
        elif op.startswith("ds_read") or op.startswith("buffer_load") or op.startswith("global_load"):
            wr = regs(ops[0]); rd = regs(ops[1].split()[0]) if len(ops) > 1 else set()
        for i in range(j - 1, max(-1, j - 24), -1):
            pop, pops, pt = ins[i]
            if not pop.startswith("v_"): continue
            if pop.startswith("v_mfma"):
                pw = regs(pops[0]); npass = 4 if "16x16x32" in pop else 8
                if op.startswith("v_mfma"):
                    if pw & (regs(ops[1]) | regs(ops[2])): need = {4: 8, 8: 12}[npass]
                    elif pw & regs(ops[3]) and pw != regs(ops[3]): need = {4: 6, 8: 10}[npass]
                    else: need = 0
                elif pw & (rd | wr): need = {4: 8, 8: 12}[npass]
                elif isv and regs(pops[3]) & wr: need = {4: 3, 8: 7}[npass]
                else: need = 0
            else:
                pw = regs(pops[0]) | (regs(pops[1]) if pop.startswith("v_permlane") else set())
                need = 0
                if op.startswith("v_mfma") and pw & rd: need = 2
                if op.startswith("v_permlane") and pw & rd: need = 2
                if op.startswith("v_readfirstlane") and pw & regs(ops[1]): need = 1
            if need and states(i, j) < need:
                raise AssertionError(f"hazard: '{pt}' -> '{t}' is {states(i, j)} states, needs {need}")

if __name__ == "__main__":
    cfg = Cfg()
    for a in sys.argv[2:]:
        k, v = a.split("=", 1)
        setattr(cfg, k, eval(v))
    open(sys.argv[1], "w").write(gen(cfg))
```

```python
import sys, re, math
KNAME = "standalone__weight_only_int_gptq__prompt_kernel"
M, N, K = 2048, 3584, 1024
ROWX = K * 2
ROWQ = N * 4
ROWS = N * 2
NST = 8
NSLOT = 5
HALF = 16384
G2STR = NSLOT * HALF
NSTEP = 32

class Cfg:
    NXB = 8
    store_flags = "sc1"
    lds = 2 * G2STR
    debug = 0
    cpf = 1
    waitgrp = 4
    spin = 0
    amp = None
    win = {"O": 24, "Y": 32}
    obar = None
    ybar = None
    nbar = 7
    dma_lead = 2
    bal = 4
    split0 = 2
    final_prio = {"O": 0, "Y": 1}
    pf = 1
    tab1_ph = 6
    b2pace = 2
    burst = {}
    stampu = [32, 64, 96, 128, 160, 192, 224]
    vrate = {}

S_X, S_Q, S_SC, S_ZR, S_OUT = 16, 20, 24, 28, 32
S_VSEL = 36
S_M03, S_THREE, S_TLO, S_THI = 40, 41, 42, 43
S_WAVE, S_XOFF, S_M0B = 44, 45, 46
S_WOFF, S_SOFF, S_OB = 48, 49, 50
S_DOFF = 51
S_T0, S_T1, S_T2, S_T3 = 60, 61, 62, 63
S_MT, S_NT = 64, 65
S_STAMP = 68

class Emit:
    def __init__(s):
        s.l = []; s.vm = []; s.lg = []
    def __call__(s, t): s.l.append("    " + t)
    def label(s, t): s.l.append(t + ":")
    def stamp(s, cfg, idx, real=None):
        if cfg.amp == idx: s("s_memrealtime s[70:71]")
        if cfg.debug:
            if real is None: real = cfg.debug == 2
            s(f"{'s_memrealtime' if real else 's_memtime'} s[{S_STAMP + 2*idx}:{S_STAMP + 2*idx + 1}]")
    def vmem(s, t, tag): s(t); s.vm.append(tag)
    def lds(s, t, tag): s(t); s.lg.append(tag)
    def wait_vm(s, tag):
        idx = [i for i, t in enumerate(s.vm) if t == tag]
        if not idx: return
        n = len(s.vm) - 1 - idx[-1]
        assert n < 64
        s(f"s_waitcnt vmcnt({n})")
        s.vm = s.vm[idx[-1] + 1:]
    def wait_lg(s, tag):
        idx = [i for i, t in enumerate(s.lg) if t == tag]
        if not idx: return
        n = len(s.lg) - 1 - idx[-1]
        assert n <= 15
        s(f"s_waitcnt lgkmcnt({n})")
        s.lg = s.lg[idx[-1] + 1:]

class Alloc:
    def __init__(s, p): s.p = p
    def __call__(s, n, al=1):
        s.p = (s.p + al - 1) // al * al
        q = s.p; s.p += n
        return q

def gen(cfg):
    e = Emit()
    al = Alloc(1)
    V_LANE = al(1); V_DMA = al(2); V_W = al(2); V_S = al(1); V_C4 = al(1); V_ST = al(4)
    V_T = al(3); V_PF = al(1)
    ADDR = [al(4), al(4)]
    WD = [[al(2, 2) for u in range(2)] for _ in range(3)]
    SZ = [al(2) for _ in range(2)]
    TB = [[[al(2) for b in range(2)] for par in range(2)] for _ in range(2)]
    W2 = al(2, 2)
    VV = [al(4, 2) for b in range(2)]
    TT = al(6)
    ACC = [[al(4, 4) for b in range(2)] for rb in range(8)]
    XF = [al(4, 4) for _ in range(cfg.NXB)]
    WF0 = al(0, 4)
    maxv = [al.p]

    m0state = [None]
    def dma1(st, j):
        if m0state[0] != (st, j >> 1):
            m0state[0] = (st, j >> 1)
            e(f"s_add_u32 m0, s{S_M0B}, {(j >> 1) * G2STR + (st % NSLOT) * HALF}")
            e(f"s_add_u32 s{S_DOFF}, s{S_XOFF}, {st * 256 + (j >> 1) * 128}")
        e.vmem(f"buffer_load_dwordx4 v{V_DMA + (j & 1)}, s[{S_X}:{S_X+3}], s{S_DOFF} offen offset:{(j & 1)*1024} lds", ("dma", st))
    def wload1(st, u):
        so = S_WOFF
        if st:
            e(f"s_add_u32 s{S_T2}, s{S_WOFF}, {st * 8 * ROWQ}"); so = S_T2
        w = WD[st % 3][u]
        e.vmem(f"buffer_load_dwordx2 v[{w}:{w+1}], v{V_W + u}, s[{S_Q}:{S_Q+3}], s{so} offen", ("w", st, u))
    def szload1(J, k):
        so = S_SOFF
        if J:
            e(f"s_add_u32 s{S_T1}, s{S_SOFF}, {J * 4 * ROWS}"); so = S_T1
        sr = (S_SC, S_ZR)[k]
        e.vmem(f"buffer_load_dword v{SZ[J % 2] + k}, v{V_S}, s[{sr}:{sr+3}], s{so} offen", ("sz", J))
    def table_ops(J):
        o = []
        sz = SZ[J % 2]; t = TT; s_, z_ = TT + 4, TT + 5
        for b in range(2):
            t0 = TB[J % 2][0][b]; t1 = TB[J % 2][1][b]
            if b == 0:
                o += [f"v_lshlrev_b32 v{s_}, 16, v{sz}", f"v_lshlrev_b32 v{z_}, 16, v{sz+1}"]
            else:
                o += [f"v_and_b32 v{s_}, 0xffff0000, v{sz}", f"v_and_b32 v{z_}, 0xffff0000, v{sz+1}"]
            o += [f"v_mul_f32 v{t}, v{z_}, v{s_}",
                  f"v_sub_f32 v{t+1}, v{s_}, v{t}",
                  f"v_fma_f32 v{t+2}, 2.0, v{s_}, -v{t}",
                  f"v_fma_f32 v{t+3}, s{S_THREE}, v{s_}, -v{t}",
                  f"v_cvt_pk_bf16_f32 v{t}, -v{t}, v{t+1}",
                  f"v_cvt_pk_bf16_f32 v{t+2}, v{t+2}, v{t+3}",
                  f"v_perm_b32 v{t0}, v{t+2}, v{t}, s{S_TLO}",
                  f"v_perm_b32 v{t1}, v{t+2}, v{t}, s{S_TLO}",
                  f"v_perm_b32 v{t0+1}, v{t+2}, v{t}, s{S_THI}",
                  f"v_perm_b32 v{t1+1}, v{t+2}, v{t}, s{S_THI}"]
        for b in range(2):
            t0 = TB[J % 2][0][b]; t1 = TB[J % 2][1][b]
            o += [f"v_permlane16_swap_b32 v{t0}, v{t1}", f"v_permlane16_swap_b32 v{t0+1}, v{t1+1}"]
        return o
    def deq_ops(G, b, f):
        st, j = divmod(G, 4)
        u, half = j >> 1, j & 1
        w = WD[st % 3][u]
        o = []
        if half == 0 and b == 0:
            o.append(f"v_lshrrev_b64 v[{W2}:{W2+1}], 2, v[{w}:{w+1}]")
        v = VV[b]; tb = TB[(st // 2) % 2][st % 2][b]
        o.append(f"v_perm_b32 v{v}, v{W2 + b}, v{w+b}, s{S_VSEL + 2*half}")
        o.append(f"v_perm_b32 v{v+1}, v{W2 + b}, v{w+b}, s{S_VSEL + 2*half + 1}")
        o.append(f"v_and_or_b32 v{f}, v{v}, s{S_M03}, v{V_C4}")
        o.append(f"v_lshrrev_b64 v[{v+2}:{v+3}], 4, v[{v}:{v+1}]")
        o.append(f"v_and_or_b32 v{f+2}, v{v+1}, s{S_M03}, v{V_C4}")
        o.append(f"v_perm_b32 v{f}, v{tb+1}, v{tb}, v{f}")
        o.append(f"v_and_or_b32 v{f+1}, v{v+2}, s{S_M03}, v{V_C4}")
        o.append(f"v_perm_b32 v{f+2}, v{tb+1}, v{tb}, v{f+2}")
        o.append(f"v_and_or_b32 v{f+3}, v{v+3}, s{S_M03}, v{V_C4}")
        o.append(f"v_perm_b32 v{f+1}, v{tb+1}, v{tb}, v{f+1}")
        o.append(f"v_perm_b32 v{f+3}, v{tb+1}, v{tb}, v{f+3}")
        return o

    def program(role):
        NXB = cfg.NXB
        Gw = cfg.win[role]
        units = []
        if role == "O" and cfg.split0:
            units += [(G, rb) for G in range(cfg.split0) for rb in range(4)]
            units += [(G, rb) for G in range(cfg.split0) for rb in range(4, 8)]
            g0 = cfg.split0
        else:
            g0 = 0
        units += [(G, rb) for G in range(g0, Gw) for rb in range(8)]
        units += [(G, rb) for rb in range(8) for G in range(Gw, NSTEP)]
        NU = len(units); assert NU == 256
        first = {}; last = {}; lastrb = {}
        for u, (G, rb) in enumerate(units):
            first.setdefault(G, u); last[G] = u; lastrb[rb] = u
        NF = max(2, NSTEP - Gw + (2 if Gw < NSTEP else 0), cfg.split0 + 1 if role == "O" else 0)
        WF = [[WF0 + 8 * i + 4 * b for b in range(2)] for i in range(NF)]
        maxv[0] = max(maxv[0], WF0 + 8 * NF)
        assert maxv[0] <= 256, maxv
        ybar = [32 * i - NXB for i in range(1, cfg.nbar + 1)] if cfg.ybar is None else list(cfg.ybar)
        bar = ybar if (role == "Y" or cfg.obar is None) else list(cfg.obar)
        assert len(bar) == cfg.nbar
        for u in range(NU):
            s_ = units[u][0] // 4
            if s_ >= 1: assert u - NXB >= bar[min(s_, cfg.nbar) - 1], (role, u, s_)
        ops = []
        for G in range(1, NSTEP):
            st, j = divmod(G, 4)
            seg = []
            for b in range(2):
                ear = 2 * last[G - NF] + 1 if G >= NF else 0
                dl = 2 * first[G] + b - 2
                if role in cfg.burst and G >= cfg.burst[role][0]:
                    gb = 2 * (first[Gw] - cfg.burst[role][1]) - 1
                    assert ear <= gb
                    ear = gb; dl = gb
                for k, t in enumerate(deq_ops(G, b, WF[G % NF][b])):
                    wt = [("w", st, j >> 1)] if (k == 0 and b == 0 and j % 2 == 0) else []
                    seg.append([t, ear, dl, wt, ("deq", G)])
            J1 = G // 8 + 1; ph = G % 8
            p0 = cfg.tab1_ph if J1 == 1 else 2
            if J1 < 4 and p0 <= ph:
                to = table_ops(J1)
                part = to[(ph - p0) * len(to) // (8 - p0):(ph - p0 + 1) * len(to) // (8 - p0)]
                pre = [[t, 0, 10**9, [("sz", J1)] if (ph == p0 and k == 0) else [], ("tab", J1)] for k, t in enumerate(part)]
                seg = pre + seg
            ops += seg
        for i in range(len(ops) - 2, -1, -1): ops[i][2] = min(ops[i][2], ops[i + 1][2])
        vm_at = {}
        def place(u0, ev, step=1):
            u = u0
            while u in vm_at or (u - 1) in vm_at or (u + 1) in vm_at or (u in bar): u += 1
            vm_at[u] = ev
            return u
        bpos = [0] + bar
        if cfg.b2pace:
            for k, ev in enumerate([("d", 1, 0), ("d", 1, 1), ("d", 1, 2), ("d", 1, 3), ("w", 1, 0), ("w", 1, 1), ("s", 1, 0), ("s", 1, 1)]):
                vm_at[k * cfg.b2pace] = ev
        for s_ in range(2, NST):
            i = s_ - cfg.dma_lead
            i = max(0, min(i, cfg.nbar - 2))
            if s_ >= NSLOT:
                while True:
                    ok = True
                    for bb, rl in ((ybar, "Y"), (ybar if cfg.obar is None else cfg.obar, "O")):
                        if i == 0 or bb[i - 1] < 32 * (s_ - NSLOT + 1): ok = False
                    if ok: break
                    i += 1
                assert i + 1 <= min(s_, cfg.nbar), (s_, i)
            a, b_ = bpos[i] + 2, bpos[i + 1]
            if i == 0 and cfg.b2pace: a = 8 * cfg.b2pace + 1
            if i + 1 == min(s_, cfg.nbar): b_ = a + (b_ - a) // 3
            for j in range(4):
                u = place(a + (b_ - a) * j // 4, ("d", s_, j))
                assert u < bpos[min(s_, cfg.nbar)]
        NG = 2 * NU
        wts = [(2.0 if g % 2 == 0 else 1.0) for g in range(NG)]
        for u in vm_at: wts[2 * u] = 0.5
        W = [0.0]
        for g in range(NG): W.append(W[-1] + wts[g])
        sched = [[] for _ in range(NG)]
        done = 0; frac = 0.0
        nb = len(ops)
        if role in cfg.burst:
            nb = min(i for i, o in enumerate(ops) if o[4] == ("deq", cfg.burst[role][0]))
        dls = sorted(set((min(o[2], NG - 1), 0) for o in ops))
        lastidx = {}
        for i, o in enumerate(ops): lastidx[min(o[2], NG - 1)] = i
        for g in range(NG):
            if done >= len(ops): break
            rate = 0.0
            for d, i in lastidx.items():
                if i >= done and d >= g:
                    ii = min(i, nb - 1)
                    rate = max(rate, (ii + 1 - done) / (W[d + 1] - W[g]))
            frac += rate * wts[g]
            n = int(frac + 1e-9)
            must = max([i + 1 - done for d, i in lastidx.items() if d <= g and i >= done] + [0])
            n = max(n, must)
            k = 0
            while k < n and done < len(ops) and ops[done][1] <= g:
                sched[g].append(ops[done]); done += 1; k += 1
            assert k >= must, (role, g, k, must)
            frac = max(0.0, frac - n) if k == n else 0.0
        assert done == len(ops)
        gap_of = {}
        for g in range(NG):
            for o in sched[g]:
                gap_of.setdefault(o[4], [g, g])[1] = g
        for st in range(2, NST):
            u0 = gap_of[("deq", 4 * (st - 3) + 3)][1] // 2 + 1 if st >= 3 else 3
            for uu in range(2):
                u = place(u0, ("w", st, uu)); u0 = u + 2
                assert 2 * u < gap_of[("deq", 4 * st + 2 * uu)][0]
        for J in range(2, 4):
            u0 = gap_of[("deq", 8 * (J - 2) + 4)][1] // 2 + 1
            for k in range(2):
                u = place(u0, ("s", J, k)); u0 = u + 2
                assert 2 * u < gap_of[("tab", J)][0]
        epi_cvt = {}; tail = []
        for rb in range(8):
            u0 = lastrb[rb] + 3
            if u0 + 5 < NU and Gw < NSTEP:
                epi_cvt[u0] = rb
                uu = u0 + 1
                for r in range(4):
                    if uu < NU and uu not in vm_at:
                        vm_at[uu] = ("st", rb, r); uu += 2 if NSTEP - Gw >= 8 else 1
                    else:
                        tail.append(("st", rb, r))
            else:
                tail.append(("cvt", rb))
                tail += [("st", rb, r) for r in range(4)]
        def cvt(rb):
            a0, a1 = ACC[rb]
            return [f"v_cvt_pk_bf16_f32 v{a0 + r}, v{a0 + r}, v{a1 + r}" for r in range(4)]
        cur_ob = [None]
        def store(rb, r):
            if cur_ob[0] != rb:
                e(f"s_add_u32 s{S_T3}, s{S_OB}, {rb * 16 * ROWS}"); cur_ob[0] = rb
            e.vmem(f"buffer_store_dword v{ACC[rb][0] + r}, v{V_ST + r}, s[{S_OUT}:{S_OUT+3}], s{S_T3} offen {cfg.store_flags}", ("st",))
        prio_at = {}
        if cfg.bal:
            for i in range(cfg.nbar):
                a, b_ = bpos[i] + 1, bpos[i + 1] + 1
                for q in range(cfg.bal):
                    prio_at[a + (b_ - a) * q // cfg.bal] = cfg.bal - 1 - q
        prio_at[bar[-1] + 1] = cfg.final_prio[role]
        def xread(u):
            G, rb = units[u]
            st, j = divmod(G, 4)
            sl = st % NSLOT
            x = XF[u % NXB]
            e.lds(f"ds_read_b128 v[{x}:{x+3}], v{ADDR[sl // 4] + j} offset:{rb * 2048 + (sl % 4) * HALF}", ("x", u))
        e.label(f"L_{role}")
        m0state[0] = None
        e.vm = [("sz", 0)] * 2 + [("w", 0, 0), ("w", 0, 1)] + [("dma", 0)] * 4
        if role == "Y" and cfg.pf: e.vm.append(("pf",))
        e.lg = []
        def startv():
            e.wait_vm(("sz", 0))
            for o in table_ops(0): e(o)
            e.wait_vm(("w", 0, 0))
            for b in range(2):
                for o in deq_ops(0, b, WF[0][b]): e(o)
        def batch2():
            if cfg.b2pace: return
            for j in range(4): dma1(1, j)
            for k in range(2): wload1(1, k)
            for k in range(2): szload1(1, k)
        nread0 = NXB
        barb = None
        if cfg.split0:
            if role == "O":
                startv()
                e.wait_vm(("dma", 0))
                e.stamp(cfg, 2)
                e("s_barrier")
                e.stamp(cfg, 3)
                nread0 = min(NXB, 4 * cfg.split0)
                for u in range(nread0): xread(u)
                batch2()
                barb = 4 * cfg.split0
            else:
                e("s_barrier")
                startv()
                e.wait_vm(("dma", 0))
                e.stamp(cfg, 2)
                e("s_barrier")
                e.stamp(cfg, 3)
                for u in range(nread0): xread(u)
                batch2()
        else:
            startv()
            e.wait_vm(("dma", 0))
            e.stamp(cfg, 2)
            e("s_barrier")
            e.stamp(cfg, 3)
            for u in range(nread0): xread(u)
            batch2()
        nextread = nread0
        for u in range(NU):
            G, rb = units[u]
            if u in cfg.stampu: e.stamp(cfg, 4 + cfg.stampu.index(u))
            if ("x", u) in e.lg:
                if u < 8: tgt = u
                elif nextread == NU: tgt = min(u + cfg.waitgrp - 1, NU - 1)
                else: tgt = max(u, min(u + cfg.waitgrp - 1, nextread - 1 - (NXB - cfg.waitgrp)))
                e.wait_lg(("x", tgt))
            x = XF[u % NXB]
            for b in range(2):
                f = WF[G % NF][b]; a = ACC[rb][b]
                srcc = "0" if G == 0 else f"v[{a}:{a+3}]"
                e(f"v_mfma_f32_16x16x32_bf16 v[{a}:{a+3}], v[{x}:{x+3}], v[{f}:{f+3}], {srcc}")
                if b == 0:
                    if u in prio_at: e(f"s_setprio {prio_at[u]}")
                    ev = vm_at.get(u)
                    if ev:
                        if ev[0] == "d": dma1(ev[1], ev[2])
                        elif ev[0] == "w": wload1(ev[1], ev[2])
                        elif ev[0] == "s": szload1(ev[1], ev[2])
                        else: store(ev[1], ev[2])
                else:
                    if u in bar:
                        i = bar.index(u) + 1
                        if i == cfg.nbar:
                            lastd = [t for t in e.vm if t[0] == "dma"]
                            if lastd: e.wait_vm(lastd[-1])
                        else:
                            e.wait_vm(("dma", i))
                        e("s_barrier")
                    if barb is not None and u == max(0, barb - cfg.barb_lead):
                        e("s_barrier"); barb = None
                    nrd = 0
                    while nextread < NU and nextread <= u + NXB and (barb is None or nextread < barb) and nrd < 2:
                        xread(nextread); nextread += 1; nrd += 1
                g = 2 * u + b
                for o in sched[g]:
                    for t in o[3]: e.wait_vm(t)
                    e(o[0])
                if u in epi_cvt:
                    for t in cvt(epi_cvt[u])[2 * b:2 * b + 2]: e(t)
        e.stamp(cfg, 11)
        for t in tail:
            if t[0] == "cvt":
                for o in cvt(t[1]): e(o)
            else: store(t[1], t[2])
        if cfg.spin:
            e("s_waitcnt vmcnt(0) lgkmcnt(0)")
            if cfg.amp is not None:
                e("s_sub_u32 s70, s70, s66")
                e("s_lshl_b32 s70, s70, 3")
                e("s_add_u32 s66, s66, s70")
            e.label(f"L_spin{role}")
            e("s_memrealtime s[68:69]")
            e("s_waitcnt lgkmcnt(0)")
            e("s_sub_u32 s68, s68, s66")
            e(f"s_cmp_lt_i32 s68, {cfg.spin}")
            e(f"s_cbranch_scc1 L_spin{role}")
        if cfg.debug:
            e.stamp(cfg, 12)
            e("s_waitcnt vmcnt(0)")
            e.stamp(cfg, 13)
            e.stamp(cfg, 14, True)
            e(f"s_getreg_b32 s{S_STAMP + 30}, hwreg(HW_REG_HW_ID)")
            e(f"s_load_dwordx2 s[{S_X}:{S_X+1}], s[0:1], 56")
            e("s_waitcnt lgkmcnt(0)")
            e(f"s_lshl_b32 s{S_T0}, s2, 3")
            e(f"s_add_u32 s{S_T0}, s{S_T0}, s{S_WAVE}")
            e(f"s_lshl_b32 s{S_T0}, s{S_T0}, 6")
            e(f"v_mov_b32 v{V_T}, 0")
            for q in range(16):
                e(f"v_mov_b32 v{V_T+1}, s{S_STAMP + 2*q}")
                e(f"buffer_store_dword v{V_T+1}, v{V_T}, s[{S_X}:{S_X+3}], s{S_T0} offen offset:{4*q}")
        e("s_endpgm")

    e.stamp(cfg, 0, True)
    if cfg.spin: e("s_memrealtime s[66:67]")
    e.stamp(cfg, 1)
    e(f"s_load_dwordx2 s[{S_SC}:{S_SC+1}], s[0:1], 16")
    e(f"s_load_dwordx2 s[{S_ZR}:{S_ZR+1}], s[0:1], 24")
    e(f"s_load_dwordx2 s[{S_Q}:{S_Q+1}], s[0:1], 8")
    e(f"s_load_dwordx2 s[{S_X}:{S_X+1}], s[0:1], 0")
    e(f"s_load_dwordx2 s[{S_OUT}:{S_OUT+1}], s[0:1], 40")
    e("s_cmp_ge_u32 s2, 224")
    e("s_cbranch_scc1 L_exit")
    e(f"s_lshr_b32 s{S_NT}, s2, 3")
    if cfg.cpf:
        e("s_getpc_b64 s[4:5]")
        e.label("L_pc")
        e(f"s_and_b32 s{S_T0}, s{S_NT}, 7")
        e(f"s_lshl_b32 s{S_T0}, s{S_T0}, 7")
        e(f"v_lshl_add_u32 v{V_T}, v0, 10, s{S_T0}")
        e(f"v_cmp_gt_u32 vcc, L_end-L_pc, v{V_T}")
        e("s_and_saveexec_b64 s[6:7], vcc")
        e("s_cbranch_execz L_nopf")
        e(f"global_load_dword v{V_PF}, v{V_T}, s[4:5]")
        e.label("L_nopf")
        e("s_mov_b64 exec, s[6:7]")
    e(f"v_lshrrev_b32 v{V_T}, 6, v0")
    e(f"v_and_b32 v{V_LANE}, 63, v0")
    e(f"v_readfirstlane_b32 s{S_WAVE}, v{V_T}")
    for sr, nb in ((S_X, M * ROWX), (S_Q, 64 * ROWQ), (S_SC, 16 * ROWS), (S_ZR, 16 * ROWS), (S_OUT, M * ROWS)):
        e(f"s_mov_b32 s{sr+2}, {nb}")
        e(f"s_mov_b32 s{sr+3}, 0x20000")
    e(f"s_and_b32 s{S_T0}, s2, 7")
    e(f"s_lshl_b32 s{S_MT}, s{S_T0}, 1")
    e(f"s_cmp_ge_u32 s{S_NT}, 14")
    e(f"s_cselect_b32 s{S_T1}, 14, 0")
    e(f"s_addc_u32 s{S_MT}, s{S_MT}, 0")
    e(f"s_sub_u32 s{S_NT}, s{S_NT}, s{S_T1}")
    e(f"s_lshl_b32 s{S_T0}, s{S_NT}, 3")
    e(f"s_add_u32 s{S_T0}, s{S_T0}, s{S_WAVE}")
    e(f"s_lshl_b32 s{S_SOFF}, s{S_T0}, 6")
    e(f"s_lshl_b32 s{S_WOFF}, s{S_T0}, 7")
    e(f"v_and_b32 v{V_T}, 15, v{V_LANE}")
    e(f"v_lshrrev_b32 v{V_T+1}, 4, v{V_LANE}")
    e(f"v_mul_u32_u24 v{V_W}, {2 * ROWQ}, v{V_T+1}")
    e(f"v_lshl_add_u32 v{V_W}, v{V_T}, 3, v{V_W}")
    e(f"v_add_u32 v{V_W+1}, {ROWQ}, v{V_W}")
    e(f"v_lshrrev_b32 v{V_T+2}, 5, v{V_LANE}")
    e(f"v_bfe_u32 v{V_T+1}, v{V_LANE}, 4, 1")
    e(f"v_lshl_add_u32 v{V_S}, v{V_T+1}, 1, v{V_T+2}")
    e(f"v_mul_u32_u24 v{V_S}, {ROWS}, v{V_S}")
    e(f"v_lshl_add_u32 v{V_S}, v{V_T}, 2, v{V_S}")
    e(f"v_lshrrev_b32 v{V_T}, 3, v{V_LANE}")
    e(f"v_mad_u32_u24 v{V_T+1}, v{V_T+2}, 6, v{V_T+1}")
    e(f"v_xor_b32 v{V_T+1}, v{V_T+1}, v{V_LANE}")
    e(f"v_and_b32 v{V_T+1}, 7, v{V_T+1}")
    e(f"v_lshlrev_b32 v{V_T+1}, 4, v{V_T+1}")
    e(f"v_lshl_add_u32 v{V_DMA}, v{V_T}, 11, v{V_T+1}")
    e(f"v_add_u32 v{V_DMA+1}, {8*ROWX - 1024}, v{V_DMA}")
    e(f"s_lshl_b32 s{S_T0}, s{S_MT}, 18")
    e(f"s_lshl_b32 s{S_T1}, s{S_WAVE}, 15")
    e(f"s_add_u32 s{S_XOFF}, s{S_T0}, s{S_T1}")
    e(f"s_lshl_b32 s{S_M0B}, s{S_WAVE}, 11")
    e("s_waitcnt lgkmcnt(0)")
    for k in range(2): szload1(0, k)
    for k in range(2): wload1(0, k)
    for j in range(4): dma1(0, j)
    if cfg.pf:
        e(f"s_cmp_lt_u32 s{S_WAVE}, 4")
        e("s_cbranch_scc1 L_pfdone")
        e(f"s_and_b32 s{S_T3}, s{S_WAVE}, 1")
        e(f"s_cmp_lt_u32 s{S_WAVE}, 6")
        e("s_cbranch_scc1 L_pfw")
        e(f"s_lshl_b32 s{S_T1}, s{S_NT}, 1")
        e(f"s_add_u32 s{S_T1}, s{S_T1}, s{S_T3}")
        e(f"s_mul_i32 s{S_T1}, s{S_T1}, 19")
        e(f"v_min_u32 v{V_T}, 18, v{V_LANE}")
        e(f"v_add_u32 v{V_T}, s{S_T1}, v{V_T}")
        e(f"v_min_u32 v{V_T}, 0x1ff, v{V_T}")
        e(f"v_lshrrev_b32 v{V_T+1}, 2, v{V_T}")
        e(f"v_and_b32 v{V_T}, 3, v{V_T}")
        e(f"v_lshlrev_b32 v{V_T}, 7, v{V_T}")
        e(f"v_lshl_add_u32 v{V_T}, v{V_T+1}, 11, v{V_T}")
        e(f"buffer_load_dword v{V_PF}, v{V_T}, s[{S_X}:{S_X+3}], s{S_T0} offen offset:256")
        e("s_branch L_pfdone")
        e.label("L_pfw")
        e(f"s_and_b32 s{S_T1}, s{S_MT}, 1")
        e(f"s_lshl_b32 s{S_T1}, s{S_T1}, 1")
        e(f"s_add_u32 s{S_T1}, s{S_T1}, s{S_T3}")
        e(f"s_add_u32 s{S_T1}, s{S_T1}, 4")
        e(f"s_mul_i32 s{S_T1}, s{S_T1}, {2 * ROWQ}")
        e(f"s_lshl_b32 s{S_T2}, s{S_NT}, 10")
        e(f"s_add_u32 s{S_T1}, s{S_T1}, s{S_T2}")
        e(f"v_min_u32 v{V_T+1}, 15, v{V_LANE}")
        e(f"v_lshrrev_b32 v{V_T}, 3, v{V_T+1}")
        e(f"v_mul_u32_u24 v{V_T}, {ROWQ}, v{V_T}")
        e(f"v_and_b32 v{V_T+1}, 7, v{V_T+1}")
        e(f"v_lshl_add_u32 v{V_T}, v{V_T+1}, 7, v{V_T}")
        e(f"buffer_load_dword v{V_PF}, v{V_T}, s[{S_Q}:{S_Q+3}], s{S_T1} offen")
        e.label("L_pfdone")
    e(f"v_mov_b32 v{V_C4}, 0x04000400")
    for i in range(4):
        e(f"s_mov_b32 s{S_VSEL+i}, 0x{i | i << 8 | (4+i) << 16 | (4+i) << 24:08x}")
    e(f"s_mov_b32 s{S_M03}, 0x03030303")
    e(f"s_mov_b32 s{S_THREE}, 0x40400000")
    e(f"s_mov_b32 s{S_TLO}, 0x06040200")
    e(f"s_mov_b32 s{S_THI}, 0x07050301")
    e(f"s_mul_i32 s{S_OB}, s{S_MT}, {128 * ROWS}")
    e(f"s_add_u32 s{S_OB}, s{S_OB}, s{S_SOFF}")
    e(f"v_and_b32 v{V_T}, 15, v{V_LANE}")
    e(f"v_bfe_u32 v{V_T+1}, v{V_LANE}, 2, 1")
    e(f"v_bfe_u32 v{V_T+2}, v{V_LANE}, 1, 1")
    e(f"v_mad_u32_u24 v{V_T+1}, v{V_T+1}, 6, v{V_T+2}")
    e(f"v_bfe_u32 v{V_T+2}, v{V_LANE}, 4, 1")
    e(f"v_lshlrev_b32 v{V_T+2}, 2, v{V_T+2}")
    e(f"v_xor_b32 v{V_T+1}, v{V_T+1}, v{V_T+2}")
    e(f"v_lshlrev_b32 v{V_T+1}, 4, v{V_T+1}")
    e(f"v_lshl_add_u32 v{V_T+1}, v{V_T}, 7, v{V_T+1}")
    e(f"v_lshrrev_b32 v{V_T+2}, 5, v{V_LANE}")
    e(f"v_mul_u32_u24 v{V_T+2}, {G2STR}, v{V_T+2}")
    e(f"v_add_u32 v{ADDR[0]}, v{V_T+2}, v{V_T+1}")
    for j in range(1, 4):
        e(f"v_xor_b32 v{ADDR[0] + j}, {j * 16}, v{ADDR[0]}")
    for j in range(4):
        e(f"v_add_u32 v{ADDR[1] + j}, 0x10000, v{ADDR[0] + j}")
    e(f"v_lshrrev_b32 v{V_T+1}, 4, v{V_LANE}")
    e(f"v_mul_u32_u24 v{V_ST}, {4 * ROWS}, v{V_T+1}")
    e(f"v_lshl_add_u32 v{V_ST}, v{V_T}, 2, v{V_ST}")
    for r in range(1, 4):
        e(f"v_add_u32 v{V_ST + r}, {r * ROWS}, v{V_ST}")
    e(f"s_cmp_ge_u32 s{S_WAVE}, 4")
    e("s_cbranch_scc1 L_Y")
    program("O")
    e.l.append(".p2align 6")
    program("Y")
    e.label("L_exit")
    e("s_endpgm")
    e.label("L_end")
    e.l = fix_hazards(e.l)
    nv = max(maxv[0], 129)
    nva = (nv + 3) // 4 * 4
    hdr = open("standalone__weight_only_int_gptq__prompt.s.ref").read().split("; @launch")[0]
    out = hdr + f"; @launch grid=(224,1,1) block=(512,1,1) lds={cfg.lds}\n"
    out += f""".amdgcn_target "amdgcn-amd-amdhsa--gfx950"
.text
.globl {KNAME}
.p2align 8
.type {KNAME},@function
{KNAME}:
"""
    out += "\n".join(e.l) + "\n"
    out += f""".section .rodata,"a"
.p2align 6
.amdhsa_kernel {KNAME}
  .amdhsa_next_free_vgpr {nv}
  .amdhsa_next_free_sgpr {102 if cfg.debug else 80}
  .amdhsa_accum_offset {nva}
  .amdhsa_group_segment_fixed_size 0
  .amdhsa_kernarg_size 64
  .amdhsa_user_sgpr_count 2
  .amdhsa_user_sgpr_kernarg_segment_ptr 1
  .amdhsa_system_sgpr_workgroup_id_x 1
  .amdhsa_float_denorm_mode_32 3
.end_amdhsa_kernel
"""
    return out

def regs(tok):
    tok = tok.strip().lstrip("-")
    m = re.fullmatch(r"v\[(\d+):(\d+)\]", tok)
    if m: return set(range(int(m.group(1)), int(m.group(2)) + 1))
    m = re.fullmatch(r"v(\d+)", tok)
    if m: return {int(m.group(1))}
    return set()
def fix_hazards(lines):
    out = []; ins = []; nfix = 0
    for l in lines:
        t = l.strip()
        if not t or t.endswith(":") or t.startswith("."):
            out.append(l); continue
        op, _, rest = t.partition(" ")
        ops = rest.split(",")
        isv = op.startswith("v_")
        rd = set(); wr = set()
        if op.startswith("v_mfma"):
            rd = regs(ops[1]) | regs(ops[2]) | regs(ops[3]); wr = regs(ops[0])
        elif op.startswith("v_permlane"):
            rd = regs(ops[0]) | regs(ops[1]); wr = rd
        elif isv:
            wr = regs(ops[0]); rd = set().union(*[regs(x.split()[0] if x.strip() else "") for x in ops[1:]]) if len(ops) > 1 else set()
        elif op.startswith("buffer_store") or op.startswith("ds_write"):
            rd = regs(ops[0]) | regs(ops[1].split()[0])
        elif op.startswith("ds_read") or op.startswith("buffer_load") or op.startswith("global_load"):
            wr = regs(ops[0]); rd = regs(ops[1].split()[0]) if len(ops) > 1 else set()
        short = 0; st = 0
        for i in range(len(ins) - 1, max(-1, len(ins) - 24), -1):
            pop, pops = ins[i]
            need = 0
            if pop.startswith("v_mfma"):
                pw = regs(pops[0]); npass = 4 if "16x16x32" in pop else 8
                if op.startswith("v_mfma"):
                    if pw & (regs(ops[1]) | regs(ops[2])): need = {4: 8, 8: 12}[npass]
                    elif pw & regs(ops[3]) and pw != regs(ops[3]): need = {4: 6, 8: 10}[npass]
                elif pw & (rd | wr): need = {4: 8, 8: 12}[npass]
                elif isv and regs(pops[3]) & wr: need = {4: 3, 8: 7}[npass]
            elif pop.startswith("v_"):
                pw = regs(pops[0]) | (regs(pops[1]) if pop.startswith("v_permlane") else set())
                if op.startswith("v_mfma") and pw & rd: need = 2
                if op.startswith("v_permlane") and pw & rd: need = 2
                if op.startswith("v_readfirstlane") and pw & regs(ops[1]): need = 1
            elif pop.startswith("s_") and pops[0].strip() == "m0" and t.endswith("lds"): need = 1
            short = max(short, need - st)
            st += int(pops[0]) + 1 if pop == "s_nop" else 1
        if short > 0:
            out.append(f"    s_nop {short - 1}"); ins.append(("s_nop", [str(short - 1)])); nfix += 1
        out.append(l); ins.append((op, ops))
    print("hazard nops inserted:", nfix, file=sys.stderr)
    return out

if __name__ == "__main__":
    cfg = Cfg()
    cfg.barb_lead = 2
    for a in sys.argv[2:]:
        k, v = a.split("=", 1)
        setattr(cfg, k, eval(v))
    open(sys.argv[1], "w").write(gen(cfg))
```

```python
import sys, re, math
KNAME = "standalone__weight_only_int_gptq__prompt_kernel"
M, N, K = 2048, 3584, 1024
ROWX = K * 2
ROWQ = N * 4
ROWS = N * 2
NST = 8
NSLOT = 5
HALF = 16384
G2STR = NSLOT * HALF
NSTEP = 32

class Cfg:
    NXB = 8
    store_flags = "sc1"
    lds = 2 * G2STR
    debug = 0
    cpf = 1
    waitgrp = 4
    spin = 0
    amp = None
    win = {"O": 24, "Y": 24}
    obar = None
    ybar = None
    nbar = 6
    dma_lead = 2
    bal = 4
    split0 = 3
    final_prio = {"O": 1, "Y": 0}
    pf = 1
    tab1_ph = 8
    b2pace = 2
    endpad = 1536
    endwait = 0
    sgprs = 80
    helper = None
    k8 = 1
    align = 1
    ypad = 0
    rot = 0
    orderY = None
    pfonlyx = 0
    latm = 14
    map16 = 1
    yd1 = 0
    b2order = None
    b2pos = {}
    lat2 = 8
    order0 = "s w0 a b"
    order1 = ""
    o1pos = 1
    pfx = 2
    pfw = 1
    pf0 = 1
    postpre = {"O": 0, "Y": 0}
    w1_ear = 0
    lat = 20
    pre = {"O": 3, "Y": 1}
    pstamp = 0
    burst = {"Y": (24, 0)}
    stampu = [32, 64, 96, 128, 160, 192, 224]
    vrate = {}

S_X, S_Q, S_SC, S_ZR, S_OUT = 16, 20, 24, 28, 32
S_VSEL = 36
S_M03, S_THREE, S_TLO, S_THI = 40, 41, 42, 43
S_WAVE, S_XOFF, S_M0B = 44, 45, 46
S_WOFF, S_SOFF, S_OB = 48, 49, 50
S_DOFF = 51
S_ROT, S_W0, S_S0 = 47, 52, 53
S_T0, S_T1, S_T2, S_T3 = 60, 61, 62, 63
S_MT, S_NT = 64, 65
S_STAMP = 68

class Emit:
    def __init__(s):
        s.l = []; s.vm = []; s.lg = []; s.issued = set()
    def __call__(s, t): s.l.append("    " + t)
    def label(s, t): s.l.append(t + ":")
    def stamp(s, cfg, idx, real=None):
        if cfg.amp == idx: s("s_memrealtime s[70:71]")
        if cfg.debug and (cfg.debug != 3 or idx in (0, 1, 13, 14)):
            if real is None: real = cfg.debug == 2
            s(f"{'s_memrealtime' if real else 's_memtime'} s[{S_STAMP + 2*idx}:{S_STAMP + 2*idx + 1}]")
    def vmem(s, t, tag): s(t); s.vm.append(tag); s.issued.add(tag)
    def lds(s, t, tag): s(t); s.lg.append(tag)
    def wait_vm(s, tag):
        assert tag in s.issued, tag
        idx = [i for i, t in enumerate(s.vm) if t == tag]
        if not idx: return
        n = len(s.vm) - 1 - idx[-1]
        assert n < 64
        s(f"s_waitcnt vmcnt({n})")
        s.vm = s.vm[idx[-1] + 1:]
    def wait_lg(s, tag):
        idx = [i for i, t in enumerate(s.lg) if t == tag]
        if not idx: return
        n = len(s.lg) - 1 - idx[-1]
        assert n <= 15
        s(f"s_waitcnt lgkmcnt({n})")
        s.lg = s.lg[idx[-1] + 1:]

class Alloc:
    def __init__(s, p): s.p = p
    def __call__(s, n, al=1):
        s.p = (s.p + al - 1) // al * al
        q = s.p; s.p += n
        return q

def gen(cfg):
    e = Emit()
    al = Alloc(1)
    V_LANE = al(1); V_DMA = al(2); V_W = al(2); V_S = al(1); V_C4 = al(1); V_ST = al(4)
    V_T = al(3); V_PF = al(1); V_PF2 = al(1)
    ADDR = [al(4), al(4)]
    WD = [[al(2, 2) for u in range(2)] for _ in range(3)]
    SZ = [al(2) for _ in range(2)]
    TB = [[[al(2) for b in range(2)] for par in range(2)] for _ in range(2)]
    W2 = al(2, 2)
    VV = [al(4, 2) for b in range(2)]
    TT = al(6)
    ACC = [[al(4, 4) for b in range(2)] for rb in range(8)]
    XF = [al(4, 4) for _ in range(cfg.NXB)]
    WF0 = al(0, 4)
    maxv = [al.p]

    state = {}
    def prep(key, val, text):
        if state.get(key) != val:
            state[key] = val
            for t in text.split(";"): e(t)
    def dma1(st, j, ph=3):
        first = st == 0 and j < 2
        if ph & 1 and not first:
            prep("m0", (st, j >> 1), f"s_add_u32 m0, s{S_M0B}, {(j >> 1) * G2STR + (st % NSLOT) * HALF};s_add_u32 s{S_DOFF}, s{S_XOFF}, {st * 256 + (j >> 1) * 128}")
        if ph & 2:
            e.vmem(f"buffer_load_dwordx4 v{V_DMA + (j & 1)}, s[{S_X}:{S_X+3}], s{S_XOFF if first else S_DOFF} offen offset:{(j & 1)*1024} lds",
                   ("dma", st) if st else ("dma", 0, j >> 1))
    def wload1(st, u, ph=3):
        if ph & 1 and st: prep("woff", st, f"s_add_u32 s{S_T2}, s{S_WOFF}, {st * 8 * ROWQ}")
        w = WD[st % 3][u]
        if ph & 2: e.vmem(f"buffer_load_dwordx2 v[{w}:{w+1}], v{V_W + u}, s[{S_Q}:{S_Q+3}], s{S_T2 if st else S_WOFF} offen", ("w", st, u))
    def szload1(J, k, ph=3):
        if ph & 1 and J: prep("soff", J, f"s_add_u32 s{S_T1}, s{S_SOFF}, {J * 4 * ROWS}")
        sr = (S_SC, S_ZR)[k]
        if ph & 2: e.vmem(f"buffer_load_dword v{SZ[J % 2] + k}, v{V_S}, s[{sr}:{sr+3}], s{S_T1 if J else S_SOFF} offen", ("sz", J))
    def batch(order):
        def ptr(sr, src):
            if cfg.k8: prep(("ptr", sr), 1, f"s_mov_b64 s[{sr}:{sr+1}], s[{src}:{src+1}]")
        for it in order.split():
            if it[0] == "w": ptr(S_Q, 10)
            if it in "ab": ptr(S_X, 8)
            if it == "s":
                for k in range(2):
                    ptr((S_SC, S_ZR)[k], 12 + 2 * k)
                    szload1(0, k)
            elif it[0] == "w":
                for k in (range(2) if len(it) == 2 else [int(it[2])]): wload1(int(it[1]), k)
            else:
                for j in range(2): dma1(0, j + (2 if it == "b" else 0))
    def table_ops(J):
        o = []
        sz = SZ[J % 2]; t = TT; s_, z_ = TT + 4, TT + 5
        for b in range(2):
            t0 = TB[J % 2][0][b]; t1 = TB[J % 2][1][b]
            if b == 0:
                o += [f"v_lshlrev_b32 v{s_}, 16, v{sz}", f"v_lshlrev_b32 v{z_}, 16, v{sz+1}"]
            else:
                o += [f"v_and_b32 v{s_}, 0xffff0000, v{sz}", f"v_and_b32 v{z_}, 0xffff0000, v{sz+1}"]
            o += [f"v_mul_f32 v{t}, v{z_}, v{s_}",
                  f"v_sub_f32 v{t+1}, v{s_}, v{t}",
                  f"v_fma_f32 v{t+2}, 2.0, v{s_}, -v{t}",
                  f"v_fma_f32 v{t+3}, s{S_THREE}, v{s_}, -v{t}",
                  f"v_cvt_pk_bf16_f32 v{t}, -v{t}, v{t+1}",
                  f"v_cvt_pk_bf16_f32 v{t+2}, v{t+2}, v{t+3}",
                  f"v_perm_b32 v{t0}, v{t+2}, v{t}, s{S_TLO}",
                  f"v_perm_b32 v{t1}, v{t+2}, v{t}, s{S_TLO}",
                  f"v_perm_b32 v{t0+1}, v{t+2}, v{t}, s{S_THI}",
                  f"v_perm_b32 v{t1+1}, v{t+2}, v{t}, s{S_THI}"]
        for b in range(2):
            t0 = TB[J % 2][0][b]; t1 = TB[J % 2][1][b]
            o += [f"v_permlane16_swap_b32 v{t0}, v{t1}", f"v_permlane16_swap_b32 v{t0+1}, v{t1+1}"]
        return o
    def deq_ops(G, b, f):
        st, j = divmod(G, 4)
        u, half = j >> 1, j & 1
        w = WD[st % 3][u]
        o = []
        if half == 0 and b == 0:
            o.append(f"v_lshrrev_b64 v[{W2}:{W2+1}], 2, v[{w}:{w+1}]")
        v = VV[b]; tb = TB[(st // 2) % 2][st % 2][b]
        o.append(f"v_perm_b32 v{v}, v{W2 + b}, v{w+b}, s{S_VSEL + 2*half}")
        o.append(f"v_perm_b32 v{v+1}, v{W2 + b}, v{w+b}, s{S_VSEL + 2*half + 1}")
        o.append(f"v_and_or_b32 v{f}, v{v}, s{S_M03}, v{V_C4}")
        o.append(f"v_lshrrev_b64 v[{v+2}:{v+3}], 4, v[{v}:{v+1}]")
        o.append(f"v_and_or_b32 v{f+2}, v{v+1}, s{S_M03}, v{V_C4}")
        o.append(f"v_perm_b32 v{f}, v{tb+1}, v{tb}, v{f}")
        o.append(f"v_and_or_b32 v{f+1}, v{v+2}, s{S_M03}, v{V_C4}")
        o.append(f"v_perm_b32 v{f+2}, v{tb+1}, v{tb}, v{f+2}")
        o.append(f"v_and_or_b32 v{f+3}, v{v+3}, s{S_M03}, v{V_C4}")
        o.append(f"v_perm_b32 v{f+1}, v{tb+1}, v{tb}, v{f+1}")
        o.append(f"v_perm_b32 v{f+3}, v{tb+1}, v{tb}, v{f+3}")
        return o

    def program(role):
        NXB = cfg.NXB
        Gw = cfg.win[role]
        units = []
        split0 = cfg.split0 if (role == "O" or not cfg.map16) else 0
        if split0:
            units += [(G, rb) for G in range(cfg.split0) for rb in range(4)]
            units += [(G, rb) for G in range(cfg.split0) for rb in range(4, 8)]
            g0 = cfg.split0
        else:
            g0 = 0
        units += [(G, rb) for G in range(g0, Gw) for rb in range(8)]
        units += [(G, rb) for rb in range(8) for G in range(Gw, NSTEP)]
        NU = len(units); assert NU == 256
        first = {}; last = {}; lastrb = {}
        for u, (G, rb) in enumerate(units):
            first.setdefault(G, u); last[G] = u; lastrb[rb] = u
        NF = max(2, NSTEP - Gw + (2 if Gw < NSTEP else 0), cfg.split0 + 1, cfg.pre[role] + 1)
        WF = [[WF0 + 8 * i + 4 * b for b in range(2)] for i in range(NF)]
        maxv[0] = max(maxv[0], WF0 + 8 * NF)
        assert maxv[0] <= 256, maxv
        ybar = [32 * i - NXB for i in range(1, cfg.nbar + 1)] if cfg.ybar is None else list(cfg.ybar)
        bar = ybar if (role == "Y" or cfg.obar is None) else list(cfg.obar)
        assert len(bar) == cfg.nbar
        for u in range(NU):
            s_ = units[u][0] // 4
            if s_ >= 1: assert u - NXB >= bar[min(s_, cfg.nbar) - 1], (role, u, s_)
        ops = []
        for G in range(cfg.pre[role], NSTEP):
            st, j = divmod(G, 4)
            seg = []
            for b in range(2):
                ear = 2 * last[G - NF] + 1 if G >= NF else 0
                dl = 2 * first[G] + b - 2
                if role in cfg.burst and G >= cfg.burst[role][0]:
                    gb = 2 * (first[Gw] - cfg.burst[role][1]) - 1
                    assert ear <= gb
                    ear = gb; dl = gb
                for k, t in enumerate(deq_ops(G, b, WF[G % NF][b])):
                    wt = [("w", st, j >> 1)] if (k == 0 and b == 0 and j % 2 == 0) else []
                    seg.append([t, ear, dl, wt, ("deq", G)])
            J1 = G // 8 + 1; ph = G % 8
            p0 = cfg.tab1_ph if J1 == 1 else 2
            if J1 < 4 and p0 <= ph:
                to = table_ops(J1)
                part = to[(ph - p0) * len(to) // (8 - p0):(ph - p0 + 1) * len(to) // (8 - p0)]
                pre = [[t, 0, 10**9, [("sz", J1)] if (ph == p0 and k == 0) else [], ("tab", J1)] for k, t in enumerate(part)]
                seg = pre + seg
            if G == 7 and cfg.tab1_ph == 8:
                seg += [[t, 0, 10**9, [("sz", 1)] if k == 0 else [], ("tab", 1)] for k, t in enumerate(table_ops(1))]
            ops += seg
        for i in range(len(ops) - 2, -1, -1): ops[i][2] = min(ops[i][2], ops[i + 1][2])
        vm_at = {}
        def place(u0, ev, step=1):
            u = u0
            while u in vm_at or (u - 1) in vm_at or (u + 1) in vm_at or (u in bar): u += 1
            vm_at[u] = ev
            return u
        bpos = [0] + bar
        if cfg.b2pace:
            b2 = [("d", 1, 0), ("d", 1, 1), ("d", 1, 2), ("d", 1, 3)]
            if cfg.map16 and cfg.yd1 and role == "Y": b2 = []
            if "w1" not in cfg.order0 + cfg.order1: b2 += [("w", 1, 0), ("w", 1, 1)]
            b2 += [("s", 1, 0), ("s", 1, 1)]
            if "w1" in cfg.order0 + cfg.order1: b2 += [("w", 2, 0), ("w", 2, 1)]
            if cfg.b2order and role in cfg.b2order: b2 = [b2[i] for i in cfg.b2order[role]]
            nb2 = len(b2)
            pos2 = cfg.b2pos.get(role) or [k * cfg.b2pace for k in range(nb2)]
            for k, ev in enumerate(b2):
                vm_at[pos2[k]] = ev
                tag = ("sz", ev[1]) if ev[0] == "s" else ev
                lat = cfg.lat2 if (cfg.helper or (cfg.pf and ev[0] == "w" and ev[1] == 1)) else cfg.lat
                for o in ops:
                    if tag in o[3]: o[1] = max(o[1], 2 * (pos2[k] + lat))
            for o in ops:
                if ("w", 1, 0) in o[3]: o[1] = max(o[1], 2 * cfg.w1_ear)
        for s_ in range(2, NST):
            i = s_ - cfg.dma_lead
            i = max(0, min(i, cfg.nbar - 2))
            if s_ >= NSLOT:
                while True:
                    ok = True
                    for bb, rl in ((ybar, "Y"), (ybar if cfg.obar is None else cfg.obar, "O")):
                        if i == 0 or bb[i - 1] < 32 * (s_ - NSLOT + 1): ok = False
                    if ok: break
                    i += 1
                assert i + 1 <= min(s_, cfg.nbar), (s_, i)
            a, b_ = bpos[i] + 2, bpos[i + 1]
            if cfg.b2pace: a = max(a, max(pos2) + 2)
            if i + 1 == min(s_, cfg.nbar): b_ = a + (b_ - a) // 3
            for j in range(4):
                u = place(a + (b_ - a) * j // 4, ("d", s_, j))
                assert u < bpos[min(s_, cfg.nbar)]
        NG = 2 * NU
        wts = [(2.0 if g % 2 == 0 else 1.0) for g in range(NG)]
        for u in vm_at: wts[2 * u] = 0.5
        W = [0.0]
        for g in range(NG): W.append(W[-1] + wts[g])
        sched = [[] for _ in range(NG)]
        done = 0; frac = 0.0
        nb = len(ops)
        if role in cfg.burst:
            nb = min(i for i, o in enumerate(ops) if o[4] == ("deq", cfg.burst[role][0]))
        dls = sorted(set((min(o[2], NG - 1), 0) for o in ops))
        lastidx = {}
        for i, o in enumerate(ops): lastidx[min(o[2], NG - 1)] = i
        for g in range(NG):
            if done >= len(ops): break
            rate = 0.0
            for d, i in lastidx.items():
                if i >= done and d >= g:
                    ii = min(i, nb - 1)
                    rate = max(rate, (ii + 1 - done) / (W[d + 1] - W[g]))
            frac += rate * wts[g]
            n = int(frac + 1e-9)
            must = max([i + 1 - done for d, i in lastidx.items() if d <= g and i >= done] + [0])
            n = max(n, must)
            k = 0
            while k < n and done < len(ops) and ops[done][1] <= g:
                sched[g].append(ops[done]); done += 1; k += 1
            assert k >= must, (role, g, k, must)
            frac = max(0.0, frac - n) if k == n else 0.0
        assert done == len(ops)
        gap_of = {}
        for g in range(NG):
            for o in sched[g]:
                gap_of.setdefault(o[4], [g, g])[1] = g
        for st in range(3 if "w1" in cfg.order0 + cfg.order1 else 2, NST):
            u0 = gap_of.get(("deq", 4 * (st - 3) + 3), [0, 40])[1] // 2 + 1 if st >= 3 else 3
            for uu in range(2):
                u = place(u0, ("w", st, uu)); u0 = u + 2
                assert 2 * u < gap_of[("deq", 4 * st + 2 * uu)][0]
        for J in range(2, 4):
            u0 = max(gap_of[("tab", J)][0] // 2 - 2 * cfg.lat, gap_of.get(("tab", J - 2), [0, 0])[1] // 2 + 1)
            for k in range(2):
                u = place(u0, ("s", J, k)); u0 = u + 2
                assert 2 * u < gap_of[("tab", J)][0]
        epi_cvt = {}; tail = []
        for rb in range(8):
            u0 = lastrb[rb] + 3
            if u0 + 5 < NU and Gw < NSTEP:
                epi_cvt[u0] = rb
                uu = u0 + 1
                for r in range(4):
                    if uu < NU and uu not in vm_at:
                        vm_at[uu] = ("st", rb, r); uu += 2 if NSTEP - Gw >= 8 else 1
                    else:
                        tail.append(("st", rb, r))
            else:
                tail.append(("cvt", rb))
                tail += [("st", rb, r) for r in range(4)]
        def cvt(rb):
            a0, a1 = ACC[rb]
            return [f"v_cvt_pk_bf16_f32 v{a0 + r}, v{a0 + r}, v{a1 + r}" for r in range(4)]
        def store(rb, r, ph=3):
            if ph & 1: prep("ob", rb, f"s_add_u32 s{S_T3}, s{S_OB}, {rb * 16 * ROWS}")
            if ph & 2: e.vmem(f"buffer_store_dword v{ACC[rb][0] + r}, v{V_ST + r}, s[{S_OUT}:{S_OUT+3}], s{S_T3} offen {cfg.store_flags}", ("st",))
        prio_at = {}
        if cfg.bal:
            for i in range(cfg.nbar):
                a, b_ = bpos[i] + 1, bpos[i + 1] + 1
                for q in range(cfg.bal):
                    prio_at[a + (b_ - a) * q // cfg.bal] = cfg.bal - 1 - q
        prio_at[bar[-1] + 1] = cfg.final_prio[role]
        def xread(u):
            G, rb = units[u]
            st, j = divmod(G, 4)
            sl = st % NSLOT
            x = XF[u % NXB]
            e.lds(f"ds_read_b128 v[{x}:{x+3}], v{ADDR[sl // 4] + j} offset:{rb * 2048 + (sl % 4) * HALF}", ("x", u))
        e.label(f"L_{role}")
        state.clear()
        e.vm = list(vm0[role]); e.issued = set(vm0[role])
        if role == "Y" and cfg.pf: e.vm.append(("pf",))
        e.lg = []
        if cfg.map16 and role == "Y": e("s_barrier")
        schemeC = cfg.orderY and role == "Y"
        if schemeC:
            e.wait_vm(("dma", 0, 1))
            e.stamp(cfg, 2)
            e("s_barrier")
            for u in range(NXB): xread(u)
        if cfg.pstamp: e.stamp(cfg, 7)
        e.wait_vm(("sz", 0))
        if cfg.pstamp: e.stamp(cfg, 8)
        if cfg.map16 and role == "Y" and cfg.yd1 == 1:
            for j in range(4): dma1(1, j)
        if cfg.o1pos == 0: batch(cfg.order1)
        for o in table_ops(0): e(o)
        if cfg.o1pos == 1: batch(cfg.order1)
        def predeq(G):
            e.wait_vm(("w", G // 4, (G >> 1) & 1))
            if cfg.pstamp and G == 0: e.stamp(cfg, 9)
            for b in range(2):
                for o in deq_ops(G, b, WF[G][b]): e(o)
            if cfg.o1pos == 2 + G: batch(cfg.order1)
        for G in range(cfg.pre[role] - cfg.postpre[role]): predeq(G)
        if cfg.map16 and role == "Y" and cfg.yd1 == 2:
            for j in range(4): dma1(1, j)
        if cfg.pstamp: e.stamp(cfg, 10)
        barb = 4 * split0 if split0 else None
        nread0 = min(NXB, barb) if barb else NXB
        if not schemeC:
            e.wait_vm(("dma", 0, 0 if (cfg.split0 and not cfg.map16) else 1))
            e.stamp(cfg, 2)
            e("s_barrier")
            e.stamp(cfg, 3)
            for u in range(nread0): xread(u)
        else:
            e.stamp(cfg, 3)
        for G in range(cfg.pre[role] - cfg.postpre[role], cfg.pre[role]): predeq(G)
        nextread = nread0
        for u in range(NU):
            G, rb = units[u]
            if u in cfg.stampu: e.stamp(cfg, 4 + cfg.stampu.index(u))
            if ("x", u) in e.lg:
                if u < 8: tgt = u
                elif nextread == NU: tgt = min(u + cfg.waitgrp - 1, NU - 1)
                else: tgt = max(u, min(u + cfg.waitgrp - 1, nextread - 1 - (NXB - cfg.waitgrp)))
                e.wait_lg(("x", tgt))
            x = XF[u % NXB]
            ev = vm_at.get(u)
            evf = {"d": dma1, "w": wload1, "s": szload1, "st": store}[ev[0]] if ev else None
            if ev: evf(ev[1], ev[2], 1)
            for b in range(2):
                f = WF[G % NF][b]; a = ACC[rb][b]
                srcc = "0" if G == 0 else f"v[{a}:{a+3}]"
                e(f"v_mfma_f32_16x16x32_bf16 v[{a}:{a+3}], v[{x}:{x+3}], v[{f}:{f+3}], {srcc}")
                if b == 0:
                    if ev: evf(ev[1], ev[2], 2)
                    if u in prio_at: e(f"s_setprio {prio_at[u]}")
                else:
                    if u in bar:
                        i = bar.index(u) + 1
                        if i == cfg.nbar:
                            lastd = [t for t in e.vm if t[0] == "dma"]
                            if lastd: e.wait_vm(lastd[-1])
                        else:
                            e.wait_vm(("dma", i))
                        e("s_barrier")
                    if barb is not None and u == max(0, barb - cfg.barb_lead):
                        e.wait_vm(("dma", 0, 1))
                        e("s_barrier"); barb = None
                    nrd = 0
                    while nextread < NU and nextread <= u + NXB and (barb is None or nextread < barb) and nrd < 2:
                        xread(nextread); nextread += 1; nrd += 1
                g = 2 * u + b
                for o in sched[g]:
                    for t in o[3]: e.wait_vm(t)
                    e(o[0])
                if u in epi_cvt:
                    for t in cvt(epi_cvt[u])[2 * b:2 * b + 2]: e(t)
        e.stamp(cfg, 11)
        for t in tail:
            if t[0] == "cvt":
                for o in cvt(t[1]): e(o)
            else: store(t[1], t[2])
        if cfg.endwait: e("s_waitcnt vmcnt(0)")
        if cfg.spin:
            e("s_waitcnt vmcnt(0) lgkmcnt(0)")
            if cfg.amp is not None:
                e("s_sub_u32 s70, s70, s66")
                e("s_lshl_b32 s70, s70, 3")
                e("s_add_u32 s66, s66, s70")
            e.label(f"L_spin{role}")
            e("s_memrealtime s[68:69]")
            e("s_waitcnt lgkmcnt(0)")
            e("s_sub_u32 s68, s68, s66")
            e(f"s_cmp_lt_i32 s68, {cfg.spin}")
            e(f"s_cbranch_scc1 L_spin{role}")
        if cfg.debug:
            e.stamp(cfg, 12)
            e("s_waitcnt vmcnt(0)")
            e.stamp(cfg, 13)
            e.stamp(cfg, 14, True)
            e(f"s_getreg_b32 s{S_STAMP + 30}, hwreg(HW_REG_HW_ID)")
            e(f"s_load_dwordx2 s[{S_X}:{S_X+1}], s[0:1], 56")
            e("s_waitcnt lgkmcnt(0)")
            e(f"s_lshl_b32 s{S_T0}, s2, 9")
            e(f"s_add_u32 s{S_T0}, s{S_T0}, s{S_WAVE}")
            e(f"v_mov_b32 v{V_T}, 0")
            for q in (range(16) if cfg.debug != 3 else (0, 1, 13, 14)):
                e(f"v_mov_b32 v{V_T+1}, s{S_STAMP + 2*q}")
                e(f"buffer_store_dword v{V_T+1}, v{V_T}, s[{S_X}:{S_X+3}], s{S_T0} offen offset:{4*q}")
        e("s_endpgm")

    e.stamp(cfg, 0, True)
    if cfg.spin: e("s_memrealtime s[66:67]")
    e.stamp(cfg, 1)
    if cfg.k8:
        e("s_load_dwordx8 s[8:15], s[0:1], 0")
    else:
        e(f"s_load_dwordx2 s[{S_SC}:{S_SC+1}], s[0:1], 16")
        e(f"s_load_dwordx2 s[{S_ZR}:{S_ZR+1}], s[0:1], 24")
        e(f"s_load_dwordx2 s[{S_Q}:{S_Q+1}], s[0:1], 8")
        e(f"s_load_dwordx2 s[{S_X}:{S_X+1}], s[0:1], 0")
        e(f"s_load_dwordx2 s[{S_OUT}:{S_OUT+1}], s[0:1], 40")
    e(f"v_readfirstlane_b32 s{S_WAVE}, v0")
    e("s_cmp_ge_u32 s2, 224")
    e("s_cbranch_scc1 L_help" if cfg.helper else "s_cbranch_scc1 L_exit")
    if cfg.cpf:
        e("s_getpc_b64 s[4:5]")
        e.label("L_pc")
        e(f"s_and_b32 s{S_T0}, s2, 0x38")
        e(f"s_lshl_b32 s{S_T0}, s{S_T0}, 4")
        e(f"v_lshl_add_u32 v{V_PF}, v0, 10, s{S_T0}")
        e(f"v_cmp_gt_u32 vcc, L_end-L_pc, v{V_PF}")
        e("s_and_saveexec_b64 s[6:7], vcc")
        e("s_cbranch_execz L_nopf")
        e(f"global_load_dword v{V_PF}, v{V_PF}, s[4:5]")
        e.label("L_nopf")
        e("s_mov_b64 exec, s[6:7]")
    VI, VQ, VHI, VLO = V_T, V_T + 1, V_T + 2, V_ST
    va = [f"v_and_b32 v{VI}, 15, v0",
          f"v_bfe_u32 v{VHI}, v0, 5, 1",
          f"v_bfe_u32 v{VLO}, v0, 4, 1",
          f"v_bfe_u32 v{VQ}, v0, 4, 2",
          f"v_lshl_add_u32 v{V_S}, v{VLO}, 1, v{VHI}",
          f"v_mul_u32_u24 v{V_W}, {2 * ROWQ}, v{VQ}",
          f"v_mul_u32_u24 v{V_S}, {ROWS}, v{V_S}",
          f"v_lshl_add_u32 v{V_W}, v{VI}, 3, v{V_W}",
          f"v_lshl_add_u32 v{V_S}, v{VI}, 2, v{V_S}",
          f"v_mad_u32_u24 v{VLO}, v{VHI}, 6, v{VLO}",
          f"v_bfe_u32 v{V_DMA}, v0, 3, 3",
          f"v_bitop3_b32 v{VLO}, v{VLO}, v0, 7 bitop3:0x28",
          f"v_add_u32 v{V_W+1}, {ROWQ}, v{V_W}",
          f"v_lshl_add_u32 v{V_DMA}, v{V_DMA}, 7, v{VLO}",
          f"v_lshlrev_b32 v{V_DMA}, 4, v{V_DMA}",
          f"v_add_u32 v{V_DMA+1}, {8*ROWX - 1024}, v{V_DMA}"]
    sa = [f"s_and_b32 s{S_T0}, s2, 0xf0",
          f"s_mov_b32 s{S_SC+2}, {16 * ROWS}",
          f"s_lshl_b32 s{S_T0}, s{S_T0}, 5",
          f"s_mov_b32 s{S_SC+3}, 0x20000",
          f"s_add_u32 s{S_SOFF}, s{S_T0}, s{S_WAVE}",
          f"s_and_b32 s{S_MT}, s2, 15",
          f"s_mov_b64 s[{S_ZR+2}:{S_ZR+3}], s[{S_SC+2}:{S_SC+3}]",
          f"s_lshl_b32 s{S_WOFF}, s{S_SOFF}, 1",
          f"s_lshl_b32 s{S_T0}, s{S_MT}, 9",
          f"s_mov_b32 s{S_Q+2}, {64 * ROWQ}",
          f"s_add_u32 s{S_T0}, s{S_T0}, s{S_WAVE}",
          f"s_mov_b32 s{S_Q+3}, s{S_SC+3}",
          f"s_lshl_b32 s{S_M0B}, s{S_WAVE}, 5",
          f"s_lshl_b32 s{S_XOFF}, s{S_T0}, 9",
          f"s_mov_b32 s{S_X+2}, {M * ROWX}",
          f"s_mov_b32 s{S_X+3}, s{S_SC+3}",
          f"s_mov_b32 m0, s{S_M0B}"]
    for i in range(max(len(va), len(sa))):
        if i < len(va): e(va[i])
        if i < len(sa): e(sa[i])
    e(f"v_and_b32 v{V_LANE}, 63, v0")
    e(f"v_mov_b32 v{V_C4}, 0x04000400")
    sa = [f"s_mov_b32 s{S_VSEL+i}, 0x{i | i << 8 | (4+i) << 16 | (4+i) << 24:08x}" for i in range(4)]
    sa += [f"s_mov_b32 s{S_M03}, 0x03030303", f"s_mov_b32 s{S_THREE}, 0x40400000", f"s_mov_b32 s{S_TLO}, 0x06040200",
           f"s_mov_b32 s{S_THI}, 0x07050301", f"s_mul_i32 s{S_OB}, s{S_MT}, {128 * ROWS}", f"s_mov_b32 s{S_OUT+2}, {M * ROWS}",
           f"s_mov_b32 s{S_OUT+3}, s{S_SC+3}", f"s_add_u32 s{S_OB}, s{S_OB}, s{S_SOFF}"]
    A0, A1 = ADDR
    va = [f"v_bfe_u32 v{A1}, v0, 2, 1",
          f"v_bfe_u32 v{A1+1}, v0, 1, 1",
          f"v_bfe_u32 v{A1+2}, v0, 4, 1",
          f"v_mad_u32_u24 v{A1}, v{A1}, 6, v{A1+1}",
          f"v_lshlrev_b32 v{A1+2}, 2, v{A1+2}",
          f"v_mul_u32_u24 v{A1+3}, {G2STR}, v{VHI}",
          f"v_xor_b32 v{A1}, v{A1}, v{A1+2}",
          f"v_lshl_add_u32 v{A1+3}, v{VI}, 7, v{A1+3}",
          f"v_mul_u32_u24 v{V_ST}, {4 * ROWS}, v{VQ}",
          f"v_lshl_add_u32 v{A0}, v{A1}, 4, v{A1+3}",
          f"v_lshl_add_u32 v{V_ST}, v{VI}, 2, v{V_ST}"]
    va += [f"v_xor_b32 v{A0 + j}, {j * 16}, v{A0}" for j in range(1, 4)]
    va += [f"v_add_u32 v{V_ST + r}, {r * ROWS}, v{V_ST}" for r in range(1, 4)]
    va += [f"v_add_u32 v{A1 + j}, 0x10000, v{A0 + j}" for j in range(4)]
    for i in range(max(len(va), len(sa))):
        if i < len(va): e(va[i])
        if i < len(sa): e(sa[i])
    vm0 = {}
    e(f"s_cmp_ge_u32 s{S_WAVE}, 256")
    e("s_cbranch_scc1 L_b1Y")
    if cfg.pstamp: e.stamp(cfg, 4)
    e("s_waitcnt lgkmcnt(0)")
    if cfg.pstamp: e.stamp(cfg, 5)
    batch(cfg.order0)
    e(f"s_load_dwordx2 s[{S_OUT}:{S_OUT+1}], s[0:1], 40")
    if cfg.pstamp: e.stamp(cfg, 6)
    vm0["O"] = list(e.vm); e.vm = []; state.clear()
    e("s_waitcnt lgkmcnt(0)")
    e("s_branch L_O")
    e.label("L_b1Y")
    S_PO = S_T3
    if cfg.pf:
        VA, VB = V_T, V_T + 1
        e(f"s_lshr_b32 s{S_NT}, s2, 4")
        e(f"s_bfe_u32 s{S_T3}, s{S_WAVE}, 0x10006")
        e(f"s_cmp_lt_u32 s{S_WAVE}, 384")
        e("s_cbranch_scc1 L_pfw")
        nl = (10, 19)[cfg.pfx - 1]
        e(f"s_lshl1_add_u32 s{S_T1}, s{S_NT}, s{S_T3}")
        e(f"s_mul_i32 s{S_T1}, s{S_T1}, {nl}")
        e(f"v_min_u32 v{VA}, {nl - 1}, v{V_LANE}")
        e(f"s_lshl_b32 s{S_PO}, s{S_MT}, 18")
        e(f"v_add_u32 v{VA}, s{S_T1}, v{VA}")
        e(f"v_min_u32 v{VA}, {256 * cfg.pfx - 1}, v{VA}")
        e(f"v_lshrrev_b32 v{VB}, {cfg.pfx}, v{VA}")
        e(f"v_and_b32 v{VA}, {2 * cfg.pfx - 1}, v{VA}")
        e(f"v_lshlrev_b32 v{VA}, 7, v{VA}")
        e(f"v_lshl_add_u32 v{VA}, v{VB}, 11, v{VA}")
        e("s_branch L_pfa")
        e.label("L_pfw")
        e(f"s_lshr_b32 s{S_T1}, s{S_MT}, 3")
        e(f"s_lshl1_add_u32 s{S_T1}, s{S_T1}, s{S_T3}")
        e(f"v_min_u32 v{VB}, 15, v{V_LANE}")
        e(f"s_add_u32 s{S_T1}, s{S_T1}, 4")
        e(f"v_lshrrev_b32 v{VA}, 3, v{VB}")
        e(f"s_mul_i32 s{S_T1}, s{S_T1}, {2 * ROWQ}")
        e(f"v_mul_u32_u24 v{VA}, {ROWQ}, v{VA}")
        e(f"s_lshl_b32 s{S_T2}, s{S_NT}, 10")
        e(f"v_and_b32 v{VB}, 7, v{VB}")
        e(f"s_add_u32 s{S_PO}, s{S_T1}, s{S_T2}")
        e(f"v_lshl_add_u32 v{VA}, v{VB}, 7, v{VA}")
        e.label("L_pfa")
    if cfg.pf0:
        nl0 = (3, 5)[cfg.pf0 - 1]
        VC, VD = V_T + 2, V_PF
        e(f"s_bfe_u32 s{S_T1}, s{S_WAVE}, 0x20006")
        e(f"s_lshr_b32 s{S_T2}, s2, 4")
        e(f"v_min_u32 v{VC}, {nl0 - 1}, v{V_LANE}")
        e(f"s_lshl2_add_u32 s{S_T1}, s{S_T2}, s{S_T1}")
        e(f"s_mul_i32 s{S_T1}, s{S_T1}, {nl0}")
        e(f"s_lshl_b32 s{S_T0}, s{S_MT}, 18")
        e(f"v_add_u32 v{VC}, s{S_T1}, v{VC}")
        if cfg.pf0 == 1: e(f"s_add_u32 s{S_T0}, s{S_T0}, {64 * ROWX}")
        e(f"v_min_u32 v{VC}, {128 * cfg.pf0 - 1}, v{VC}")
        e(f"v_lshrrev_b32 v{VD}, 1, v{VC}")
        e(f"v_and_b32 v{VC}, 1, v{VC}")
        e(f"v_lshlrev_b32 v{VC}, 7, v{VC}")
        e(f"v_lshl_add_u32 v{VC}, v{VD}, 11, v{VC}")
    if cfg.pstamp: e.stamp(cfg, 4)
    e("s_waitcnt lgkmcnt(0)")
    if cfg.pstamp: e.stamp(cfg, 5)
    if cfg.pf0:
        prep(("ptr", S_X), 1, f"s_mov_b64 s[{S_X}:{S_X+1}], s[8:9]")
        e(f"buffer_load_dword v{VD}, v{VC}, s[{S_X}:{S_X+3}], s{S_T0} offen")
    batch(cfg.orderY or cfg.order0)
    vm0["Y"] = list(e.vm)
    e(f"s_load_dwordx2 s[{S_OUT}:{S_OUT+1}], s[0:1], 40")
    if cfg.pf:
        e(f"s_cmp_lt_u32 s{S_WAVE}, 384")
        e("s_cbranch_scc1 L_pfw2")
        e(f"buffer_load_dword v{V_PF2}, v{VA}, s[{S_X}:{S_X+3}], s{S_PO} offen offset:256")
        e("s_branch L_pfdone")
        e.label("L_pfw2")
        e(f"buffer_load_dword v{V_PF2}, v{VA}, s[{S_Q}:{S_Q+3}], s{S_PO} offen")
        e.label("L_pfdone")
    if cfg.pstamp: e.stamp(cfg, 6)
    e("s_waitcnt lgkmcnt(0)")
    e("s_branch L_Y")
    if cfg.helper:
        e.label("L_help")
        e("s_cmp_ge_u32 s2, 256")
        e("s_cbranch_scc1 L_hexit")
        e(f"s_cmp_lg_u32 s{S_WAVE}, 0")
        e("s_cbranch_scc1 L_hexit")
        e(f"s_bfe_u32 s{S_T0}, s2, 0x20003")
        e(f"v_lshlrev_b32 v1, 11, v0")
        e(f"v_lshlrev_b32 v2, 7, v0")
        for sr, nb in ((S_X, M * ROWX), (S_Q, 64 * ROWQ), (S_SC, 16 * ROWS), (S_ZR, 16 * ROWS)):
            e(f"s_mov_b32 s{sr+2}, {nb}")
            e(f"s_mov_b32 s{sr+3}, 0x20000")
        e(f"s_and_b32 s{S_T1}, s2, 7")
        e(f"s_lshr_b32 s{S_T2}, s{S_T0}, 1")
        e(f"s_lshl3_add_u32 s{S_T1}, s{S_T2}, s{S_T1}")
        e(f"s_and_b32 s{S_T2}, s{S_T0}, 1")
        e(f"s_lshl1_add_u32 s{S_T1}, s{S_T1}, s{S_T2}")
        e(f"s_lshl_b32 s{S_XOFF}, s{S_T1}, 17")
        e(f"s_mul_i32 s{S_WOFF}, s{S_T0}, {2 * ROWQ}")
        e(f"s_mul_i32 s{S_SOFF}, s{S_T0}, {ROWS}")
        e("s_waitcnt lgkmcnt(0)")
        for sr, src in ((S_X, 8), (S_Q, 10), (S_SC, 12), (S_ZR, 14)):
            e(f"s_mov_b64 s[{sr}:{sr+1}], s[{src}:{src+1}]")
        n = 0
        for it in cfg.helper.split():
            k = int(it[1])
            if it[0] == "x":
                for c in range(2):
                    e(f"buffer_load_dword v3, v1, s[{S_X}:{S_X+3}], s{S_XOFF} offen offset:{k * 256 + c * 128}"); n += 1
            elif it[0] == "w":
                for c in (range(4) if len(it) == 2 else ((0, 1), (2, 3))[int(it[2])]):
                    off = k * 8 * ROWQ + (c >> 1) * ROWQ + (c & 1) * (ROWQ - 8192)
                    e(f"s_add_u32 s{S_T1}, s{S_WOFF}, {off}")
                    e(f"buffer_load_dword v3, v2, s[{S_Q}:{S_Q+3}], s{S_T1} offen"); n += 1
            else:
                e(f"s_add_u32 s{S_T1}, s{S_SOFF}, {k * 4 * ROWS}")
                e(f"buffer_load_dword v3, v2, s[{S_SC}:{S_SC+3}], s{S_T1} offen")
                e(f"buffer_load_dword v3, v2, s[{S_ZR}:{S_ZR+3}], s{S_T1} offen"); n += 2
        assert n < 63
        e.label("L_hexit")
        e("s_endpgm")
    program("O")
    e.label("L_Oend")
    if cfg.align:
        e.l.append(".p2align 12")
        e.l.append(f".fill {cfg.ypad // 4}, 4, 0xbf800000")
    else:
        e.l.append(".p2align 6")
    program("Y")
    e.label("L_exit")
    e("s_endpgm")
    e.label("L_last")
    if cfg.align:
        e.l.append(".p2align 12")
    else:
        for _ in range(cfg.endpad // 4): e("s_nop 0")
        if cfg.endpad: e("s_endpgm")
    e.label("L_end")
    e.l = fix_hazards(e.l)
    nv = max(maxv[0], 129)
    nva = (nv + 3) // 4 * 4
    hdr = open("standalone__weight_only_int_gptq__prompt.s.ref").read().split("; @launch")[0]
    out = hdr + f"; @launch grid=({256 if cfg.helper else 224},1,1) block=(512,1,1) lds={cfg.lds}\n"
    out += f""".amdgcn_target "amdgcn-amd-amdhsa--gfx950"
.text
.globl {KNAME}
{".p2align 12" if cfg.align else ""}
.p2align 8
.type {KNAME},@function
{KNAME}:
"""
    out += "\n".join(e.l) + "\n"
    out += f""".section .rodata,"a"
.p2align 6
.amdhsa_kernel {KNAME}
  .amdhsa_next_free_vgpr {nv}
  .amdhsa_next_free_sgpr {102 if cfg.debug else cfg.sgprs}
  .amdhsa_accum_offset {nva}
  .amdhsa_group_segment_fixed_size 0
  .amdhsa_kernarg_size 64
  .amdhsa_user_sgpr_count 2
  .amdhsa_user_sgpr_kernarg_segment_ptr 1
  .amdhsa_system_sgpr_workgroup_id_x 1
  .amdhsa_float_denorm_mode_32 3
.end_amdhsa_kernel
"""
    return out

def regs(tok):
    tok = tok.strip().lstrip("-")
    m = re.fullmatch(r"v\[(\d+):(\d+)\]", tok)
    if m: return set(range(int(m.group(1)), int(m.group(2)) + 1))
    m = re.fullmatch(r"v(\d+)", tok)
    if m: return {int(m.group(1))}
    return set()
def fix_hazards(lines):
    out = []; ins = []; nfix = 0
    for l in lines:
        t = l.strip()
        if not t or t.endswith(":") or t.startswith("."):
            out.append(l); continue
        op, _, rest = t.partition(" ")
        ops = rest.split(",")
        isv = op.startswith("v_")
        rd = set(); wr = set()
        if op.startswith("v_mfma"):
            rd = regs(ops[1]) | regs(ops[2]) | regs(ops[3]); wr = regs(ops[0])
        elif op.startswith("v_permlane"):
            rd = regs(ops[0]) | regs(ops[1]); wr = rd
        elif isv:
            wr = regs(ops[0]); rd = set().union(*[regs(x.split()[0] if x.strip() else "") for x in ops[1:]]) if len(ops) > 1 else set()
        elif op.startswith("buffer_store") or op.startswith("ds_write"):
            rd = regs(ops[0]) | regs(ops[1].split()[0])
        elif op.startswith("ds_read") or op.startswith("buffer_load") or op.startswith("global_load"):
            wr = regs(ops[0]); rd = regs(ops[1].split()[0]) if len(ops) > 1 else set()
        short = 0; st = 0
        for i in range(len(ins) - 1, max(-1, len(ins) - 24), -1):
            pop, pops = ins[i]
            need = 0
            if pop.startswith("v_mfma"):
                pw = regs(pops[0]); npass = 4 if "16x16x32" in pop else 8
                if op.startswith("v_mfma"):
                    if pw & (regs(ops[1]) | regs(ops[2])): need = {4: 8, 8: 12}[npass]
                    elif pw & regs(ops[3]) and pw != regs(ops[3]): need = {4: 6, 8: 10}[npass]
                elif pw & (rd | wr): need = {4: 8, 8: 12}[npass]
                elif isv and regs(pops[3]) & wr: need = {4: 3, 8: 7}[npass]
            elif pop.startswith("v_"):
                pw = regs(pops[0]) | (regs(pops[1]) if pop.startswith("v_permlane") else set())
                if op.startswith("v_mfma") and pw & rd: need = 2
                if op.startswith("v_permlane") and pw & rd: need = 2
                if op.startswith("v_readfirstlane") and pw & regs(ops[1]): need = 1
            elif pop.startswith("s_") and pops[0].strip() == "m0" and t.endswith("lds"): need = 1
            short = max(short, need - st)
            st += int(pops[0]) + 1 if pop == "s_nop" else 1
        if short > 0:
            out.append(f"    s_nop {short - 1}"); ins.append(("s_nop", [str(short - 1)])); nfix += 1
        out.append(l); ins.append((op, ops))
    print("hazard nops inserted:", nfix, file=sys.stderr)
    return out

if __name__ == "__main__":
    cfg = Cfg()
    cfg.barb_lead = 2
    for a in sys.argv[2:]:
        k, v = a.split("=", 1)
        setattr(cfg, k, eval(v))
    open(sys.argv[1], "w").write(gen(cfg))
    import subprocess
    def syms():
        subprocess.run(["clang", "-x", "assembler", "-target", "amdgcn-amd-amdhsa", "-mcpu=gfx950", "-c", sys.argv[1], "-o", "_g.o"], check=True)
        o = subprocess.run(["llvm-readelf", "-s", "_g.o"], capture_output=True, text=True).stdout
        return {l.split()[-1]: int(l.split()[1], 16) for l in o.splitlines() if " L_" in l}
    if cfg.align:
        y = syms()
        n = y["L_last"] - y["L_Y"]
        cfg.ypad = (-n) % 4096 // 64 * 64
        open(sys.argv[1], "w").write(gen(cfg))
        y = syms()
        print({k: hex(v) for k, v in y.items() if k in ("L_O", "L_Y", "L_last", "L_end", "L_Oend")}, file=sys.stderr)
```
